```python
import torch

def _softmax(x, axis=-1):
    return torch.softmax(x, dim=axis)
def _gelu(x):
    return torch.nn.functional.gelu(x, approximate="tanh")
def _silu(x):
    return torch.nn.functional.silu(x)
def _sigmoid(x):
    return torch.sigmoid(x)
def _layernorm(x, axis=-1, eps=1e-5):
    m = x.mean(dim=axis, keepdim=True)
    v = x.var(dim=axis, keepdim=True, unbiased=False)
    return (x - m) / torch.sqrt(v + eps)
def _scatter_add(tgt, idx, src, axis=0):
    return tgt.clone().index_add_(axis, idx, src)
def _segment_sum(src, seg, n):
    out = torch.zeros((n,) + src.shape[1:], dtype=src.dtype)
    return out.index_add_(0, seg, src)
def _pad(x, pw):
    flat = tuple(v for pair in reversed(pw) for v in pair)
    return torch.nn.functional.pad(x, flat)

kernel_name = 'concat_heads__ssm_conv_s4__ssm_conv_s5__prompt'

def setup_inputs():

    _w = (lambda a: (lambda t: t.to(torch.bfloat16) if t.is_floating_point() else t)(torch.as_tensor(a)))
    def _A_setup():
        B, L, D, N = 1, 2048, 576, 128
        A_re = -(lambda _x: torch.exp(torch.as_tensor(_x)))((lambda *s: torch.randn(*s, dtype=torch.bfloat16) * 3.2)(D, N))
        A_im = torch.pi * (lambda *s: torch.randn(*s, dtype=torch.bfloat16) * 0.05)(D, N)
        B_re = (lambda *s: torch.randn(*s, dtype=torch.bfloat16) * 0.1)(D, N)
        B_im = (lambda *s: torch.randn(*s, dtype=torch.bfloat16) * 0.1)(D, N)
        C_re = (lambda *s: torch.randn(*s, dtype=torch.bfloat16) * 0.1)(D, N)
        C_im = (lambda *s: torch.randn(*s, dtype=torch.bfloat16) * 0.1)(D, N)
        log_dt = (lambda *s: torch.randn(*s, dtype=torch.bfloat16) * 0.05)(D) * 0.5 - 4.0
        Dskip = (lambda *s: torch.randn(*s, dtype=torch.bfloat16) * 0.05)(D)
        return {
            "u": _w((lambda *s: torch.randn(*s, dtype=torch.bfloat16) * 0.05)(B, L, D)),
            "A_re": _w(A_re),
            "A_im": _w(A_im),
            "B_re": _w(B_re),
            "B_im": _w(B_im),
            "C_re": _w(C_re),
            "C_im": _w(C_im),
            "log_dt": _w(log_dt),
            "Dskip": _w(Dskip),
        }
    _A_in = _A_setup()

    def _B_setup():
        B, S, D = 1, 2048, 576
        P = D
        Lambda_re = -0.5 * (lambda _x: torch.exp(torch.as_tensor(_x)))((lambda *s: torch.randn(*s, dtype=torch.bfloat16) * 0.2)(P))
        Lambda_im = (lambda *s: torch.randn(*s, dtype=torch.bfloat16) * 0.4)(P) * 1.0
        B_re = (lambda *s: torch.randn(*s, dtype=torch.bfloat16) * 0.2)(P, D) * (D ** -0.5)
        B_im = (lambda *s: torch.randn(*s, dtype=torch.bfloat16) * 0.2)(P, D) * (D ** -0.5)
        C_re = (lambda *s: torch.randn(*s, dtype=torch.bfloat16) * 0.2)(D, P) * (P ** -0.5)
        C_im = (lambda *s: torch.randn(*s, dtype=torch.bfloat16) * 0.2)(D, P) * (P ** -0.5)
        log_dt = (lambda *s: torch.randn(*s, dtype=torch.bfloat16) * 0.2)(P) * 0.3 - 2.0
        Dskip = (lambda *s: torch.randn(*s, dtype=torch.bfloat16) * 0.05)(D)
        return {
            "x": _w((lambda *s: torch.randn(*s, dtype=torch.bfloat16) * 0.05)(B, S, D)),
            "Lambda_re": _w(Lambda_re),
            "Lambda_im": _w(Lambda_im),
            "B_re": _w(B_re),
            "B_im": _w(B_im),
            "C_re": _w(C_re),
            "C_im": _w(C_im),
            "log_dt": _w(log_dt),
            "Dskip": _w(Dskip),
        }
    _B_in = _B_setup()

    return {
        "A_u": _A_in["u"],
        "A_A_re": _A_in["A_re"],
        "A_A_im": _A_in["A_im"],
        "A_B_re": _A_in["B_re"],
        "A_B_im": _A_in["B_im"],
        "A_C_re": _A_in["C_re"],
        "A_C_im": _A_in["C_im"],
        "A_log_dt": _A_in["log_dt"],
        "A_Dskip": _A_in["Dskip"],
        "B_x": _B_in["x"],
        "B_Lambda_re": _B_in["Lambda_re"],
        "B_Lambda_im": _B_in["Lambda_im"],
        "B_B_re": _B_in["B_re"],
        "B_B_im": _B_in["B_im"],
        "B_C_re": _B_in["C_re"],
        "B_C_im": _B_in["C_im"],
        "B_log_dt": _B_in["log_dt"],
        "B_Dskip": _B_in["Dskip"],
    }

def reference(A_u, A_A_re, A_A_im, A_B_re, A_B_im, A_C_re, A_C_im, A_log_dt, A_Dskip, B_x, B_Lambda_re, B_Lambda_im, B_B_re, B_B_im, B_C_re, B_C_im, B_log_dt, B_Dskip):
    def _A_ref(u, A_re, A_im, B_re, B_im, C_re, C_im, log_dt, Dskip):
        Bsz, L, D = u.shape
        dt = torch.exp(log_dt)[:, None]
        A = A_re + 1j * A_im
        Bc = B_re + 1j * B_im
        Cc = C_re + 1j * C_im
        logdA = dt * A
        dB = dt * Bc
        l = (lambda x, dt: x.to(dt))(torch.arange(L), A_re.dtype)
        P = torch.exp(logdA[:, :, None] * l[None, None, :])
        K = torch.einsum("dn,dnl,dn->dl", Cc, P, dB).real
        L2 = 2 * L
        Kp = _pad(K, ((0, 0), (0, L)))
        up = (lambda x, *d: x.permute(*d))(u, 0, 2, 1)
        up = _pad(up, ((0, 0), (0, 0), (0, L)))
        Kf = (lambda x, axes=(-2,-1): torch.fft.rfft2(x.float(), dim=axes))(Kp[:, None, :], axes=(-2, -1))
        Uf = (lambda x, axes=(-2,-1): torch.fft.rfft2(x.float(), dim=axes))(up[:, :, None, :], axes=(-2, -1))
        Yf = Uf * Kf[None, :, :, :]
        y = (lambda x, s, axes=(-2,-1): torch.fft.irfft2(x, s=s, dim=axes).to(torch.bfloat16))(Yf, (1, L2), axes=(-2, -1))[:, :, 0, :L]
        y = (lambda x, *d: x.permute(*d))(y, 0, 2, 1) + u * Dskip[None, None, :]
        return y

    def _B_ref(x, Lambda_re, Lambda_im, B_re, B_im, C_re, C_im, log_dt, Dskip):
        Bsz, L, H = x.shape
        Lam = Lambda_re + 1j * Lambda_im
        Bmat = B_re + 1j * B_im
        Cmat = C_re + 1j * C_im
        dt = torch.exp(log_dt)
        Lam_bar = torch.exp(dt * Lam)
        B_bar = ((Lam_bar - 1.0) / Lam)[:, None] * Bmat
        Bu = torch.einsum("bld,pd->blp", x + 0j, B_bar)
        h = torch.zeros_like(Bu[:, 0, :])
        hs = []
        for t in range(L):
            h = Lam_bar[None, :] * h + Bu[:, t, :]
            hs.append(h)
        hseq = torch.stack(hs, 1)
        y = 2.0 * torch.einsum("blp,dp->bld", hseq, Cmat).real + x * Dskip[None, None, :]
        return y

    a = _A_ref(A_u, A_A_re, A_A_im, A_B_re, A_B_im, A_C_re, A_C_im, A_log_dt, A_Dskip)
    b = _B_ref(B_x, B_Lambda_re, B_Lambda_im, B_B_re, B_B_im, B_C_re, B_C_im, B_log_dt, B_Dskip)
    return torch.concatenate([a, b], axis=-1)
```

```python
HEADER = open("concat_heads__ssm_conv_s4__ssm_conv_s5__prompt.s.ref").read().split("; Override launch")[0]

KOFF = dict(A_u=0, A_A_re=8, A_A_im=16, A_B_re=24, A_B_im=32, A_C_re=40, A_C_im=48, A_log_dt=56, A_Dskip=64,
            B_x=72, B_Lambda_re=80, B_Lambda_im=88, B_B_re=96, B_B_im=104, B_C_re=112, B_C_im=120, B_log_dt=128,
            B_Dskip=136, out=144, dbg=152, ws=160)
STAMP_OFF = 128 << 20

class Asm:
    def __init__(self):
        self.lines = []
        self.nlab = 0
    def __call__(self, s, *args):
        if args: s = s % args
        for l in s.split("\n"):
            l = l.strip()
            if not l: continue
            self.lines.append(l if l.endswith(":") else "    " + l)
    def c(self, s):
        self.lines.append("    ; " + s)
    def label(self, base="L"):
        self.nlab += 1
        return "%s_%d" % (base, self.nlab)
    def text(self):
        return "\n".join(self.lines) + "\n"

def v(i, n=1):
    return "v%d" % i if n == 1 else "v[%d:%d]" % (i, i + n - 1)
def a(i, n=1):
    return "a%d" % i if n == 1 else "a[%d:%d]" % (i, i + n - 1)
def s(i, n=1):
    return "s%d" % i if n == 1 else "s[%d:%d]" % (i, i + n - 1)

def kernel_begin(A, name):
    A.lines.append(".p2align 8")
    A.lines.append(".globl %s" % name)
    A.lines.append(".type %s,@function" % name)
    A.lines.append("%s:" % name)

def kd(name, vgpr, sgpr, accum):
    return (".p2align 6\n.amdhsa_kernel %s\n  .amdhsa_next_free_vgpr %d\n  .amdhsa_next_free_sgpr %d\n  .amdhsa_accum_offset %d\n"
            "  .amdhsa_group_segment_fixed_size 0\n  .amdhsa_kernarg_size 168\n  .amdhsa_user_sgpr_count 2\n"
            "  .amdhsa_user_sgpr_kernarg_segment_ptr 1\n  .amdhsa_system_sgpr_workgroup_id_x 1\n.end_amdhsa_kernel\n") % (name, vgpr, sgpr, accum)

def file_text(launches, body, kds):
    t = HEADER
    for k, g, b, lds in launches:
        t += "; @launch kernel=%s grid=(%d,1,1) block=(%d,1,1) lds=%d\n" % (k, g, b, lds)
    t += '.amdgcn_target "amdgcn-amd-amdhsa--gfx950"\n.text\n'
    t += body
    t += '.section .rodata,"a"\n'
    t += "".join(kds)
    return t

def srd(A, d, base, nbytes):
    A("s_mov_b32 s%d, s%d" % (d, base))
    A("s_and_b32 s%d, s%d, 0xffff" % (d + 1, base + 1))
    A("s_mov_b32 s%d, 0x%x" % (d + 2, nbytes))
    A("s_mov_b32 s%d, 0x00020000" % (d + 3))
```

```python
import re
TRANS = ("v_exp_f32", "v_log_f32", "v_rcp_f32", "v_rsq_f32", "v_sqrt_f32", "v_sin_f32", "v_cos_f32")
REG = re.compile(r"^(-|abs\()?\s*([vas])(\d+)\)?$")
RNG = re.compile(r"^(-)?([vas])\[(\d+):(\d+)\]$")

def regs_of(op):
    op = op.strip()
    m = REG.match(op)
    if m: return {(m.group(2), int(m.group(3)))}
    m = RNG.match(op)
    if m: return {(m.group(2), i) for i in range(int(m.group(3)), int(m.group(4)) + 1)}
    if op == "vcc": return {("s", "vcc")}
    if op == "m0": return {("s", "m0")}
    if op == "exec": return {("s", "exec")}
    return set()

def split_ops(s):
    out, depth, cur = [], 0, ""
    for ch in s:
        if ch in "[(": depth += 1
        if ch in "])": depth -= 1
        if ch == "," and depth == 0:
            out.append(cur); cur = ""
        else: cur += ch
    if cur.strip(): out.append(cur)
    return [o.strip() for o in out]

class I:
    pass

def parse(line):
    t = line.split(";")[0].strip()
    i = I(); i.text = line; i.kind = None; i.w = set(); i.r = set(); i.states = 1
    if not t or t.startswith("."):
        i.kind = "nil"; i.states = 0; return i
    if t.endswith(":"):
        i.kind = "label"; i.states = 0; return i
    parts = t.split(None, 1)
    mn = parts[0]; rest = parts[1] if len(parts) > 1 else ""
    i.mn = mn
    ops = split_ops(rest)
    mods = ""
    if ops:
        lastp = ops[-1].split()
        ops[-1] = lastp[0]; mods = " ".join(lastp[1:])
    i.mods = mods
    R = [regs_of(o) for o in ops]
    allr = set().union(*R) if R else set()
    if mn == "s_nop":
        i.kind = "salu"; i.states = int(ops[0], 0) + 1; return i
    if mn.startswith("s_cbranch") or mn == "s_branch" or mn == "s_endpgm" or mn.startswith("s_setpc") or mn.startswith("s_swappc"):
        i.kind = "branch"; return i
    if mn.startswith("s_"):
        i.kind = "salu"
        if mn.startswith("s_cmp") or mn in ("s_waitcnt", "s_barrier", "s_sleep", "s_setprio", "s_bitcmp1_b32", "s_bitcmp0_b32"):
            i.r = allr
        else:
            i.w = R[0] if R else set(); i.r = set().union(*R[1:]) if len(R) > 1 else set()
        return i
    if mn.startswith("v_mfma"):
        i.kind = "mfma"; i.w = R[0]; i.a = R[1] | R[2]; i.c = R[3]; i.r = i.a | i.c
        i.passes = 4 if "16x16x32" in mn else 8
        assert "16x16x32" in mn or "32x32x16" in mn, mn
        return i
    if mn.startswith("v_"):
        i.kind = "valu"
        i.trans = mn.replace("_e32", "").replace("_e64", "") in TRANS
        i.dpp = "dpp" in mn or "row_" in mods or "quad_perm" in mods
        i.perm = mn.startswith("v_permlane")
        i.rl = mn.startswith("v_readfirstlane") or mn.startswith("v_readlane")
        i.w = set(R[0]); i.r = set().union(*R[1:]) if len(R) > 1 else set()
        if mn.startswith("v_fmac") or mn.startswith("v_pk_fmac") or mn.startswith("v_writelane"): i.r |= R[0]
        if i.perm: i.w |= R[1]; i.r |= R[0]
        assert not mn.startswith("v_cmpx"), "no cmpx"
        assert "_co_" not in mn, "no carry ops"
        return i
    if mn.startswith("ds_"):
        i.kind = "ds"
        if "addtid" in mn:
            i.r = allr | {("s", "m0")}; return i
        if mn.startswith("ds_read") or mn.startswith("ds_bpermute") or mn.startswith("ds_swizzle"):
            i.w = R[0]; i.r = set().union(*R[1:])
        else:
            i.r = allr
        return i
    if mn.startswith("buffer_") or mn.startswith("global_"):
        i.kind = "vmem"
        i.lds = " lds" in (" " + mods)
        i.wide_store = False
        if mn in ("buffer_inv", "buffer_wbl2"): return i
        if "store" in mn:
            i.r = allr
            if "x3" in mn or "x4" in mn:
                i.wide_store = True
                i.data = R[0] if mn.startswith("buffer_") else R[1]
        elif "atomic" in mn:
            i.r = allr
            if "sc0" in mods: i.w = R[0]
        elif i.lds:
            i.r = allr | {("s", "m0")}
        else:
            i.w = R[0]; i.r = set().union(*R[1:])
        return i
    raise ValueError("unknown instruction: " + line)

def vec(rs): return {r for r in rs if r[0] in "va"}
def sca(rs): return {r for r in rs if r[0] == "s"}

def need(p, c):
    n = 0
    if p.kind == "valu":
        wv, ws = vec(p.w), sca(p.w)
        if c.kind == "mfma" and wv & c.r: n = max(n, 2)
        if c.kind == "valu":
            if p.trans and not c.trans and wv & c.r: n = max(n, 1)
            if p.trans and c.trans and wv & c.r: n = max(n, 1)
            if c.rl and wv & c.r: n = max(n, 1)
            if (c.perm or c.dpp) and wv & c.r: n = max(n, 2)
            if ws & c.r: n = max(n, 4 if c.rl or c.mn.startswith("v_writelane") else 2)
        if c.kind == "vmem" and ws & c.r: n = max(n, 5)
        if c.kind == "salu" and ws & c.r: n = max(n, 1)
        if c.kind == "branch" and ws: n = max(n, 1)
    elif p.kind == "mfma":
        big = {4: 8, 8: 12}[p.passes]; mid = {4: 6, 8: 10}[p.passes]; war = {4: 3, 8: 7}[p.passes]
        if c.kind == "mfma":
            if p.w & c.a: n = max(n, big)
            if p.w & c.c and not (p.w == c.c and p.passes == c.passes): n = max(n, mid)
            if p.w & c.w and not (p.w == c.c): n = max(n, mid)
        elif c.kind in ("valu", "ds", "vmem"):
            if p.w & (c.r | c.w): n = max(n, big)
            if c.kind == "valu" and p.c & c.w: n = max(n, war)
    elif p.kind == "salu":
        if ("s", "m0") in p.w and c.kind == "vmem" and c.lds: n = max(n, 1)
        if ("s", "m0") in p.w and c.kind == "ds" and "addtid" in c.mn: n = max(n, 1)
    elif p.kind == "vmem":
        if p.wide_store and c.kind in ("valu", "mfma", "ds", "vmem") and p.data & c.w: n = max(n, 2)
    return n

def maxneed(p):
    if p.kind == "valu": return 5 if sca(p.w) else 2
    if p.kind == "mfma": return {4: 8, 8: 12}[p.passes]
    if p.kind == "salu": return 1 if ("s", "m0") in p.w else 0
    if p.kind == "vmem": return 2 if p.wide_store else 0
    return 0

def fix(lines):
    out = []; hist = []
    nins = 0
    def pad(k):
        nonlocal nins
        while k > 0:
            m = min(k, 16)
            out.append("    s_nop %d" % (m - 1)); nins += 1
            for h in hist: h[1] += m
            k -= m
    for line in lines:
        c = parse(line)
        if c.kind == "nil":
            out.append(line); continue
        if c.kind in ("label", "branch"):
            extra = c.states
            k = max([maxneed(p) - d - extra for p, d in hist] + [need(p, c) - d for p, d in hist] + [0])
            pad(k)
            out.append(line)
            hist = []
            continue
        k = max([need(p, c) - d for p, d in hist] + [0])
        pad(k)
        out.append(line)
        for h in hist: h[1] += c.states
        hist.append([c, 0])
        hist = [h for h in hist if h[1] < 13]
    return out, nins
```

```python
import sys
from asmlib import *
import hazard

LOG2E = 0x3fb8aa3b
INV2PI = 0x3e22f983
WS_E = 0x1000
WS_H = 0x100000
CH_BYTES = 36 * 8192
NB = 144

class G:
    def __init__(self, stamps=False):
        self.A = Asm(); self.stamps = stamps; self.nst = 0; self.opt = {}
    def stamp(self, i, grp=None):
        if not self.stamps: return
        if (grp or "std") != self.opt.get("stgrp", "std") and i != 0: return
        self.A("s_memrealtime s[%d:%d]" % (80 + 2 * i, 81 + 2 * i))
    def write_stamps(self, n, rec_sreg, ws_srd, lab):
        if not self.stamps: return
        A = self.A
        A("s_waitcnt lgkmcnt(0)")
        A("s_mov_b64 exec, 1")
        A("s_lshl_b32 s78, s%d, 6" % rec_sreg); A("s_add_u32 s78, s78, %d" % STAMP_OFF); A("v_mov_b32 v1, s78")
        for i in range(n):
            A("v_mov_b32 v2, s%d" % (80 + 2 * i)); A("v_mov_b32 v3, s%d" % (81 + 2 * i))
            A("buffer_store_dwordx2 v[2:3], v1, s[%d:%d], 0 offen offset:%d" % (ws_srd, ws_srd + 3, 8 * i))
            A("s_nop 1")

def cexp(A, dst, er, ei, m, t0, t1):
    if m is None:
        A("v_exp_f32 v%d, v%d" % (t0, er)); A("v_fract_f32 v%d, v%d" % (t1, ei))
    else:
        A("v_mul_f32 v%d, %s, v%d" % (t0, m, er)); A("v_mul_f32 v%d, %s, v%d" % (t1, m, ei))
        A("v_exp_f32 v%d, v%d" % (t0, t0)); A("v_fract_f32 v%d, v%d" % (t1, t1))
    A("v_cos_f32 v%d, v%d" % (dst, t1)); A("v_sin_f32 v%d, v%d" % (dst + 1, t1))
    A("v_mul_f32 v%d, v%d, v%d" % (dst, t0, dst)); A("v_mul_f32 v%d, v%d, v%d" % (dst + 1, t0, dst + 1))

def cfma(A, d, a, b, c):
    A("v_fma_f32 v%d, v%d, v%d, v%d" % (d, a, b, c)); A("v_fma_f32 v%d, v%d, v%d, v%d" % (d + 1, a, b + 1, c + 1))
    A("v_fma_f32 v%d, -v%d, v%d, v%d" % (d, a + 1, b + 1, d)); A("v_fma_f32 v%d, v%d, v%d, v%d" % (d + 1, a + 1, b, d + 1))

def f32hex(x):
    import struct
    return "0x%08x" % struct.unpack("<I", struct.pack("<f", x))[0]

def b_decode(A):
    A("s_and_b32 s4, s2, 7"); A("s_lshr_b32 s5, s2, 3")
    A("s_cmp_ge_u32 s5, 9"); A("s_cselect_b32 s6, 1, 0")
    A("s_lshl_b32 s4, s4, 1"); A("s_add_u32 s4, s4, s6")
    A("s_mul_i32 s7, s6, 9"); A("s_sub_u32 s5, s5, s7")

def emit_B1(g, name):
    A = g.A
    kernel_begin(A, name)
    g.stamp(0)
    Lend = name + "_end"; Lload = name + "_loader"
    A("s_cmp_ge_u32 s2, %d" % NB); A("s_cbranch_scc1 %s" % Lend)
    A("s_load_dwordx2 s[20:21], s[0:1], %d" % KOFF["B_x"])
    A("s_load_dwordx4 s[24:27], s[0:1], %d" % KOFF["B_Lambda_re"])
    A("s_load_dwordx4 s[28:31], s[0:1], %d" % KOFF["B_B_re"])
    A("s_load_dwordx2 s[32:33], s[0:1], %d" % KOFF["B_log_dt"])
    A("s_load_dwordx4 s[36:39], s[0:1], %d" % KOFF["dbg"])
    b_decode(A)
    A("v_lshrrev_b32 v2, 6, v0"); A("v_and_b32 v1, 63, v0")
    A("v_readfirstlane_b32 s3, v2")
    A("s_add_u32 s6, s5, s4")
    for _ in range(2):
        A("s_cmp_ge_u32 s6, 9"); A("s_cselect_b32 s7, 9, 0"); A("s_sub_u32 s6, s6, s7")
    A("s_waitcnt lgkmcnt(0)")
    srd(A, 16, 38, 0x10000000)
    A("s_cmp_ge_u32 s3, 4"); A("s_cbranch_scc1 %s" % Lload)

    ACR, ACI, BUF = 64, 96, (128, 168)
    LAM, KAP, L16, MU, NU, LG = 20, 22, 24, 26, 28, 30
    XA, BA = 32, 58
    NPRE = 4
    A("v_and_b32 v3, 15, v1"); A("v_lshrrev_b32 v4, 4, v1")
    A("s_lshl_b32 s40, s5, 6"); A("s_lshl_b32 s41, s3, 4"); A("s_add_u32 s40, s40, s41")
    A("v_add_u32 v5, s40, v3"); A("v_lshlrev_b32 v6, 1, v5")
    A("global_load_ushort v8, v6, s[24:25]"); A("global_load_ushort v9, v6, s[26:27]"); A("global_load_ushort v10, v6, s[32:33]")
    A("v_mov_b32 v17, 0"); A("buffer_load_dword v18, v17, s[16:19], 0 offen sc1")
    A("v_lshrrev_b32 v7, 1, v3"); A("v_xor_b32 v7, v7, v4"); A("v_lshlrev_b32 v7, 4, v7"); A("v_lshl_add_u32 v%d, v3, 7, v7" % XA)
    A("v_xor_b32 v%d, 64, v%d" % (XA + 1, XA))
    for i in range(2, 6): A("v_add_u32 v%d, 0x10000, v%d" % (XA + i, XA + i - 2))
    A("s_lshl_b32 s41, s3, 11")
    for i in range(6): A("v_add_u32 v%d, s41, v%d" % (BA + i, XA + i))
    A("s_barrier")
    for i in range(64): A("v_mov_b32 v%d, 0" % (ACR + i))
    A("s_waitcnt vmcnt(0)")
    A("v_add_u32 v18, 1, v18")
    A("v_lshlrev_b32 v8, 16, v8"); A("v_lshlrev_b32 v9, 16, v9"); A("v_lshlrev_b32 v10, 16, v10")
    A("v_mul_f32 v10, 0x%x, v10" % LOG2E); A("v_exp_f32 v10, v10")
    A("v_cvt_pk_bf16_f32 v10, v10, v10"); A("v_and_b32 v10, 0xffff0000, v10")
    A("v_mul_f32 v11, v10, v8"); A("v_mul_f32 v12, v10, v9")
    A("v_mul_f32 v11, 0x%x, v11" % LOG2E); A("v_mul_f32 v12, 0x%x, v12" % INV2PI)
    cexp(A, LAM, 11, 12, None, 13, 14)
    cexp(A, L16, 11, 12, f32hex(16.0), 13, 14)
    cexp(A, MU, 11, 12, f32hex(32.0), 13, 14)
    cexp(A, NU, 11, 12, f32hex(128.0), 13, 14)
    A("v_lshlrev_b32 v15, 5, v4"); A("v_cvt_f32_u32 v15, v15")
    cexp(A, LG, 11, 12, "v15", 13, 14)
    A("v_add_f32 v13, -1.0, v%d" % LAM)
    A("v_mul_f32 v14, v8, v8"); A("v_fmac_f32 v14, v9, v9"); A("v_rcp_f32 v14, v14"); A("v_add_f32 v14, v14, v14")
    A("v_mul_f32 v15, v13, v8"); A("v_fmac_f32 v15, v%d, v9" % (LAM + 1))
    A("v_mul_f32 v16, v%d, v8" % (LAM + 1)); A("v_fma_f32 v16, -v13, v9, v16")
    A("v_mul_f32 v%d, v15, v14" % KAP); A("v_mul_f32 v%d, v16, v14" % (KAP + 1))
    for i in range(NPRE - 2): A("s_barrier")

    def reads(stage, kk, buf):
        slot = stage % 5; hi = slot >> 1; so = (slot & 1) * 32768
        L = []
        L.append("ds_read_b128 %s, v%d offset:%d" % (v(buf + 32, 4), BA + kk + 2 * hi, so + 16384))
        L.append("ds_read_b128 %s, v%d offset:%d" % (v(buf + 36, 4), BA + kk + 2 * hi, so + 16384 + 8192))
        for k in range(8):
            L.append("ds_read_b128 %s, v%d offset:%d" % (v(buf + 4 * k, 4), XA + kk + 2 * hi, so + 2048 * k))
        return L
    RPOS = [0, 1, 3, 4, 6, 7, 9, 10, 12, 13]
    def mfmas(buf, rd, first=False):
        rd = list(rd); n = 0
        for k in range(8):
            if not first:
                issued = len([p for p in RPOS if p < n]) if rd or n == 0 or True else 0
                issued = min(issued, nrd[0])
                if not g.opt.get("fewwait") or k in (0, 4): A("s_waitcnt lgkmcnt(%d)" % ((7 - k + issued) if not g.opt.get("fewwait") else (4 - k + issued)))
            for ac, bo in ((ACR, 32), (ACI, 36)):
                A("v_mfma_f32_16x16x32_bf16 %s, %s, %s, %s" % (v(ac + 4 * k, 4), v(buf + 4 * k, 4), v(buf + bo, 4), v(ac + 4 * k, 4)))
                if n in RPOS and rd:
                    r = rd.pop(0)
                    if not g.opt.get("noread"): A(r)
                n += 1
    nrd = [10]
    g.stamp(1)
    A("s_barrier")
    g.stamp(2)
    for r in reads(0, 0, BUF[0]): A(r)
    for st in range(9):
        mfmas(BUF[0], reads(st, 1, BUF[1]))
        if st < 8:
            A("s_barrier")
            mfmas(BUF[1], reads(st + 1, 0, BUF[0]))
        else:
            nrd[0] = 0
            mfmas(BUF[1], [])
    g.stamp(3)
    ER, EI, T1, T2 = 40, 42, 44, 46
    def pr(s): return ACR + 4 * (s >> 1) + 2 * (s & 1)
    def pi(s): return ACI + 4 * (s >> 1) + 2 * (s & 1)
    LO = "op_sel:[0,0,0] op_sel_hi:[0,1,1]"; HI = "op_sel:[1,0,0] op_sel_hi:[1,1,1]"; NEG = " neg_lo:[1,0,0] neg_hi:[1,0,0]"
    er, ei = pr(0), pi(0)
    for s in range(1, 16):
        nr, ni = (ER, EI) if s & 1 else (T1, T2)
        A("v_pk_fma_f32 %s, %s, %s, %s %s" % (v(nr, 2), v(LAM, 2), v(er, 2), v(pr(s), 2), LO))
        A("v_pk_fma_f32 %s, %s, %s, %s %s" % (v(ni, 2), v(LAM, 2), v(ei, 2), v(pi(s), 2), LO))
        A("v_pk_fma_f32 %s, %s, %s, %s %s" % (v(nr, 2), v(LAM, 2), v(ei, 2), v(nr, 2), HI + NEG))
        A("v_pk_fma_f32 %s, %s, %s, %s %s" % (v(ni, 2), v(LAM, 2), v(er, 2), v(ni, 2), HI))
        er, ei = nr, ni
    assert er == ER
    EA, EG = 48, 50
    A("v_mov_b32 v%d, v%d" % (EA, ER)); A("v_mov_b32 v%d, v%d" % (EA + 1, EI))
    A("v_mov_b32 v%d, v%d" % (EG, ER + 1)); A("v_mov_b32 v%d, v%d" % (EG + 1, EI + 1))
    cfma(A, EG, L16, EA, EG)
    SCR = 0
    A("s_lshl_b32 s41, s3, 9"); A("s_add_u32 s41, s41, %d" % SCR)
    A("v_lshl_add_u32 v6, v1, 3, s41"); A("v_lshl_add_u32 v7, v3, 3, s41")
    A("ds_write_b64 v6, %s" % v(EG, 2))
    A("s_waitcnt lgkmcnt(0)")
    E0 = 208
    A("ds_read2_b64 %s, v7 offset0:0 offset1:16" % v(E0, 4)); A("ds_read2_b64 %s, v7 offset0:32 offset1:48" % v(E0 + 4, 4))
    A("s_waitcnt lgkmcnt(0)")
    eg = [E0, E0 + 2, E0 + 4, E0 + 6]
    cfma(A, eg[1], MU, eg[0], eg[1])
    cfma(A, eg[2], MU, eg[1], eg[2])
    cfma(A, eg[3], MU, eg[2], eg[3])
    PUB = 216
    A("v_mov_b32 v%d, v%d" % (PUB, eg[3])); A("v_mov_b32 v%d, v18" % (PUB + 1)); A("v_mov_b32 v%d, v%d" % (PUB + 2, eg[3] + 1)); A("v_mov_b32 v%d, v18" % (PUB + 3))
    A("v_lshlrev_b32 v19, 4, v5")
    A("s_mul_i32 s42, s4, %d" % (576 * 16)); A("s_add_u32 s42, s42, %d" % WS_E)
    A("s_mov_b64 exec, 0xffff")
    A("buffer_store_dwordx4 %s, v19, s[16:19], s42 offen sc1" % v(PUB, 4))
    A("s_mov_b64 exec, -1")
    g.stamp(4)
    PG = 52
    A("v_cmp_eq_u32 vcc, 1, v4"); A("v_cndmask_b32 v%d, 0, v%d, vcc" % (PG, eg[0])); A("v_cndmask_b32 v%d, 0, v%d, vcc" % (PG + 1, eg[0] + 1))
    A("v_cmp_eq_u32 vcc, 2, v4"); A("v_cndmask_b32 v%d, v%d, v%d, vcc" % (PG, PG, eg[1])); A("v_cndmask_b32 v%d, v%d, v%d, vcc" % (PG + 1, PG + 1, eg[1] + 1))
    A("v_cmp_eq_u32 vcc, 3, v4"); A("v_cndmask_b32 v%d, v%d, v%d, vcc" % (PG, PG, eg[2])); A("v_cndmask_b32 v%d, v%d, v%d, vcc" % (PG + 1, PG + 1, eg[2] + 1))
    LB = 128
    Lpoll = name + "_poll"; Lchk = name + "_chk"; Liss = name + "_iss"; Lnolb = name + "_nolb"
    for i in range(15):
        A("v_mov_b32 v%d, 0" % (LB + 4 * i)); A("v_mov_b32 v%d, 0" % (LB + 4 * i + 2))
    def issue_lb(lab):
        A("s_mov_b32 s43, s42")
        for i in range(15):
            A("s_cmp_le_u32 s4, %d" % i); A("s_cbranch_scc1 %s" % lab)
            A("s_sub_u32 s43, s43, %d" % (576 * 16))
            A("buffer_load_dwordx4 %s, v19, s[16:19], s43 offen sc1" % v(LB + 4 * i, 4))
        A(lab + ":")
    issue_lb(Liss)
    LO2 = "op_sel:[0,0] op_sel_hi:[0,1]"; HI2 = "op_sel:[1,0] op_sel_hi:[1,1]"; NEG2 = " neg_lo:[1,0] neg_hi:[1,0]"
    for s in range(16):
        ta, tb = (T1, T2) if s & 1 else (ER, EI)
        A("v_pk_mul_f32 %s, %s, %s %s" % (v(ta, 2), v(KAP, 2), v(pr(s), 2), LO2))
        A("v_pk_mul_f32 %s, %s, %s %s" % (v(tb, 2), v(KAP, 2), v(pr(s), 2), HI2 + NEG2))
        A("v_pk_fma_f32 %s, %s, %s, %s %s" % (v(pr(s), 2), v(KAP, 2), v(pi(s), 2), v(ta, 2), HI + NEG))
        A("v_pk_fma_f32 %s, %s, %s, %s %s" % (v(pi(s), 2), v(KAP, 2), v(pi(s), 2), v(tb, 2), LO + NEG))
    A(Lpoll + ":")
    A("s_waitcnt vmcnt(0)")
    A("s_mov_b64 s[44:45], -1")
    for i in range(15):
        A("s_cmp_le_u32 s4, %d" % i); A("s_cbranch_scc1 %s" % Lchk)
        A("v_cmp_eq_u32 vcc, v18, v%d" % (LB + 4 * i + 1)); A("s_and_b64 s[44:45], s[44:45], vcc")
        A("v_cmp_eq_u32 vcc, v18, v%d" % (LB + 4 * i + 3)); A("s_and_b64 s[44:45], s[44:45], vcc")
    A(Lchk + ":")
    A("s_cmp_eq_u64 s[44:45], -1"); A("s_cbranch_scc1 %s" % Lnolb)
    issue_lb(Liss + "2")
    A("s_branch %s" % Lpoll)
    A(Lnolb + ":")
    g.stamp(5)
    H = [54, 56]
    A("v_mov_b32 v%d, v%d" % (H[0], LB + 56)); A("v_mov_b32 v%d, v%d" % (H[0] + 1, LB + 58))
    cur = 0
    for i in range(13, -1, -1):
        d, b = H[1 - cur], H[cur]
        A("v_fma_f32 v%d, v%d, v%d, v%d" % (d, NU, b, LB + 4 * i)); A("v_fma_f32 v%d, v%d, v%d, v%d" % (d + 1, NU, b + 1, LB + 4 * i + 2))
        A("v_fma_f32 v%d, -v%d, v%d, v%d" % (d, NU + 1, b + 1, d)); A("v_fma_f32 v%d, v%d, v%d, v%d" % (d + 1, NU + 1, b, d + 1))
        cur = 1 - cur
    cfma(A, PG, LG, H[cur], PG)
    cfma(A, EA, L16, PG, EA)
    A("v_mov_b32 v%d, v%d" % (T1, PG)); A("v_mov_b32 v%d, v%d" % (T1 + 1, EA))
    A("v_mov_b32 v%d, v%d" % (T2, PG + 1)); A("v_mov_b32 v%d, v%d" % (T2 + 1, EA + 1))
    A("v_pk_mul_f32 %s, %s, %s %s" % (v(ER, 2), v(KAP, 2), v(T1, 2), LO2))
    A("v_pk_mul_f32 %s, %s, %s %s" % (v(EI, 2), v(KAP, 2), v(T1, 2), HI2 + NEG2))
    A("v_pk_fma_f32 %s, %s, %s, %s %s" % (v(ER, 2), v(KAP, 2), v(T2, 2), v(ER, 2), HI + NEG))
    A("v_pk_fma_f32 %s, %s, %s, %s %s" % (v(EI, 2), v(KAP, 2), v(T2, 2), v(EI, 2), LO + NEG))
    OUT = 128
    A("s_mul_i32 s46, s4, %d" % CH_BYTES); A("s_lshl_b32 s47, s5, 2"); A("s_add_u32 s47, s47, s3"); A("s_lshl_b32 s47, s47, 13")
    A("s_add_u32 s46, s46, s47"); A("s_add_u32 s46, s46, %d" % WS_H); A("s_add_u32 s47, s46, 4096")
    A("v_lshlrev_b32 v6, 4, v1")
    er, ei = ER, EI
    for s in range(16):
        A("v_pk_fma_f32 %s, %s, %s, %s %s" % (v(pr(s), 2), v(LAM, 2), v(er, 2), v(pr(s), 2), LO))
        A("v_pk_fma_f32 %s, %s, %s, %s %s" % (v(pi(s), 2), v(LAM, 2), v(ei, 2), v(pi(s), 2), LO))
        A("v_pk_fma_f32 %s, %s, %s, %s %s" % (v(pr(s), 2), v(LAM, 2), v(ei, 2), v(pr(s), 2), HI))
        A("v_pk_fma_f32 %s, %s, %s, %s %s" % (v(pi(s), 2), v(LAM, 2), v(er, 2), v(pi(s), 2), HI + NEG))
        er, ei = pr(s), pi(s)
        if s & 1:
            k = s >> 1
            for pl, ac in ((0, ACR), (1, ACI)):
                A("v_cvt_pk_bf16_f32 v%d, v%d, v%d" % (OUT + 16 * pl + k, ac + 4 * k, ac + 4 * k + 2))
                A("v_cvt_pk_bf16_f32 v%d, v%d, v%d" % (OUT + 16 * pl + 8 + k, ac + 4 * k + 1, ac + 4 * k + 3))
            if k in (3, 7):
                hf = k >> 2
                for pl in (0, 1):
                    for run in (0, 1):
                        q = 2 * run + hf
                        A("buffer_store_dwordx4 %s, v6, s[16:19], s%d offen offset:%d %s" % (v(OUT + 16 * pl + 8 * run + 4 * hf, 4), 46 + pl, q * 1024, g.hstore_aux))
    g.stamp(6)
    if g.stamps:
        A("s_waitcnt vmcnt(0)")
        g.stamp(7)
        A("s_cmp_lg_u32 s3, 0"); A("s_cbranch_scc1 %s" % Lend)
        g.write_stamps(8, 2, 16, Lend)
    A("s_branch %s" % Lend)

    A(Lload + ":")
    A("s_sub_u32 s40, s3, 4")
    srd(A, 8, 20, 2048 * 1152)
    A("s_cmp_ge_u32 s40, 2"); A("s_cselect_b32 s48, s30, s28"); A("s_cselect_b32 s49, s31, s29")
    srd(A, 12, 48, 576 * 1152)
    A("v_mov_b32 v20, 0")
    A("buffer_load_dword v21, v20, s[16:19], 0 offen sc1")
    A("s_mov_b32 s41, 1152")
    A("v_lshrrev_b32 v3, 4, v1"); A("v_and_b32 v4, 7, v1"); A("v_xor_b32 v4, v4, v3"); A("v_lshlrev_b32 v4, 4, v4")
    A("v_xor_b32 v5, 64, v4")
    A("v_lshrrev_b32 v6, 5, v1"); A("v_lshlrev_b32 v6, 5, v6")
    A("v_bfe_u32 v7, v1, 3, 1"); A("v_lshl_add_u32 v6, v7, 4, v6")
    A("v_bfe_u32 v7, v1, 4, 1"); A("v_add_u32 v6, v6, v7")
    A("s_lshl_b32 s42, s4, 7"); A("s_lshl_b32 s43, s40, 2"); A("s_add_u32 s42, s42, s43")
    A("v_add_u32 v6, s42, v6"); A("v_mul_lo_u32 v6, v6, s41")
    for n in range(4):
        A("v_add_u32 v%d, v6, v%d" % (8 + n, 4 + (n & 1)))
        if n: A("v_add_u32 v%d, %d, v%d" % (8 + n, (64 * (n & 1) + 2 * (n >> 1)) * 1152, 8 + n))
    A("s_lshl_b32 s42, s5, 6"); A("s_and_b32 s43, s40, 1"); A("s_lshl_b32 s43, s43, 5"); A("s_add_u32 s42, s42, s43")
    A("v_lshrrev_b32 v6, 3, v1"); A("v_add_u32 v6, s42, v6"); A("v_mul_lo_u32 v6, v6, s41")
    for n in range(4):
        A("v_add_u32 v%d, v6, v%d" % (12 + n, 4 + (n & 1)))
        if n: A("v_add_u32 v%d, %d, v%d" % (12 + n, 8 * n * 1152, 12 + n))
    A("s_lshl_b32 s42, s40, 12")
    A("s_lshl_b32 s43, s6, 7")
    def issue(stage):
        slot = stage % 5
        if g.opt.get("nodma") and stage >= 5: return
        for n in range(4):
            A("s_add_u32 m0, s42, %d" % (slot * 32768 + 1024 * n))
            A("buffer_load_dwordx4 v%d, s[8:11], s43 offen lds" % (8 + n))
        for n in range(4):
            A("s_add_u32 m0, s42, %d" % (slot * 32768 + 16384 + 1024 * n))
            A("buffer_load_dwordx4 v%d, s[12:15], s43 offen lds" % (12 + n))
        A("s_add_u32 s43, s43, 128"); A("s_cmp_ge_u32 s43, 1152"); A("s_cselect_b32 s44, 1152, 0"); A("s_sub_u32 s43, s43, s44")
    for st in range(NPRE):
        issue(st)
        if st < NPRE - 1: A("s_barrier")
    issued = NPRE
    Lskip = name + "_skipn"
    for st in range(9):
        A("s_waitcnt vmcnt(%d)" % (8 * (issued - st - 1)))
        A("s_barrier")
        if st == 0:
            A("s_cmp_lg_u32 s3, 4"); A("s_cbranch_scc1 %s" % Lskip)
            A("s_mov_b64 exec, 1")
            A("v_add_u32 v21, 1, v21")
            A("v_mov_b32 v23, 1"); A("v_mov_b32 v24, 12")
            A("global_atomic_add v25, v24, v23, s[36:37] sc0 sc1")
            A("s_mov_b64 exec, -1")
            A(Lskip + ":")
        if issued < 9 and (st == 0 or st >= 2):
            issue(issued); issued += 1
    A("s_cmp_lg_u32 s3, 4"); A("s_cbranch_scc1 %s" % Lend)
    A("s_waitcnt vmcnt(0)")
    A("s_mov_b64 exec, 1")
    A("v_cmp_eq_u32 vcc, %d, v25" % (NB - 1)); A("s_and_b64 exec, exec, vcc"); A("s_cbranch_execz %s" % Lend)
    A("buffer_store_dword v21, v20, s[16:19], 0 offen sc1")
    A(Lend + ":")
    A("s_endpgm")

def emit_B2(g, name):
    A = g.A
    kernel_begin(A, name)
    g.stamp(0)
    Lend = name + "_end"
    A("s_cmp_ge_u32 s2, %d" % NB); A("s_cbranch_scc1 %s" % Lend)
    A("s_load_dwordx2 s[20:21], s[0:1], %d" % KOFF["B_x"])
    A("s_load_dwordx4 s[28:31], s[0:1], %d" % KOFF["B_C_re"])
    A("s_load_dwordx4 s[32:35], s[0:1], %d" % KOFF["B_Dskip"])
    A("s_load_dwordx2 s[38:39], s[0:1], %d" % KOFF["ws"])
    b_decode(A)
    A("v_lshrrev_b32 v2, 6, v0"); A("v_and_b32 v1, 63, v0")
    A("v_readfirstlane_b32 s3, v2")
    A("s_add_u32 s6, s5, s4")
    for _ in range(2):
        A("s_cmp_ge_u32 s6, 9"); A("s_cselect_b32 s7, 9, 0"); A("s_sub_u32 s6, s6, s7")
    A("s_waitcnt lgkmcnt(0)")
    srd(A, 16, 38, 0x10000000)
    gemm2_body(g, name)
    A(Lend + ":")
    A("s_endpgm")

def gemm2_body(g, name):
    A = g.A
    Lend = name + "_end"
    CREG = 128
    ACC = 32
    HB = (48, 64)
    CB = (80, 88)
    CLDS = 81920; BLK = 8704
    srd(A, 8, 20, 2048 * 1152)
    A("s_cmp_ge_u32 s3, 4"); A("s_cselect_b32 s48, s30, s28"); A("s_cselect_b32 s49, s31, s29")
    srd(A, 12, 48, 576 * 1152)
    srd(A, 24, 34, 2048 * 4608)
    A("s_mov_b32 s41, 1152")
    A("v_lshrrev_b32 v3, 4, v1"); A("v_and_b32 v4, 7, v1"); A("v_xor_b32 v4, v4, v3"); A("v_lshlrev_b32 v4, 4, v4")
    A("v_xor_b32 v5, 64, v4")
    A("s_lshl_b32 s42, s5, 6"); A("s_and_b32 s43, s3, 3"); A("s_lshl_b32 s43, s43, 4"); A("s_add_u32 s43, s42, s43")
    A("v_lshrrev_b32 v6, 3, v1"); A("v_add_u32 v6, s43, v6"); A("v_mul_lo_u32 v6, v6, s41")
    A("v_add_u32 v8, v6, v4"); A("v_add_u32 v9, v6, v5"); A("v_add_u32 v9, %d, v9" % (8 * 1152))
    A("s_lshl_b32 s44, s3, 11")
    A("s_lshl_b32 s43, s6, 7")
    for st in range(9):
        base = st * 16384 if st < 4 else CLDS + (st - 4) * 16384
        for n in range(2):
            A("s_add_u32 m0, s44, %d" % (base + 1024 * n))
            A("buffer_load_dwordx4 v%d, s[12:15], s43 offen lds" % (8 + n))
        A("s_add_u32 s43, s43, 128"); A("s_cmp_ge_u32 s43, 1152"); A("s_cselect_b32 s45, 1152, 0"); A("s_sub_u32 s43, s43, s45")
    A("v_and_b32 v3, 15, v1"); A("v_lshrrev_b32 v4, 4, v1")
    A("s_lshr_b32 s50, s3, 1"); A("s_and_b32 s51, s3, 1")
    A("s_lshl_b32 s52, s51, 5"); A("s_add_u32 s52, s52, s42")
    A("v_add_u32 v10, s52, v3")
    A("s_lshl_b32 s53, s4, 7"); A("s_lshl_b32 s54, s50, 5"); A("s_add_u32 s53, s53, s54")
    A("v_lshl_add_u32 v11, v4, 2, s53")
    A("v_mul_lo_u32 v12, v11, s41"); A("v_lshl_add_u32 v12, v10, 1, v12"); A("v_add_u32 v13, %d, v12" % (16 * 1152))
    for i in range(16): A("v_mov_b32 v%d, 0" % (ACC + i))
    A("v_mov_b32 v14, 0"); A("v_mov_b32 v15, 0")
    for tt in range(2):
        for dtl in range(2):
            for r in range(4):
                A("buffer_load_short_d16_hi v%d, v%d, s[8:11], 0 offen offset:%d" % (ACC + 8 * tt + 4 * dtl + r, 12 + tt, r * 1152 + dtl * 32))
    A("v_lshlrev_b32 v16, 1, v10")
    A("global_load_short_d16_hi v14, v16, s[32:33]"); A("global_load_short_d16_hi v15, v16, s[32:33] offset:32")
    A("s_mov_b32 s55, 4608")
    A("v_mul_lo_u32 v17, v11, s55"); A("v_lshl_add_u32 v17, v10, 2, v17"); A("v_add_u32 v17, 2304, v17")
    for i in range(8): A("s_mov_b32 s%d, %d" % (56 + i, (16 * (i >> 2) + (i & 3)) * 4608))
    CA = 20
    A("v_lshrrev_b32 v5, 1, v4"); A("v_lshlrev_b32 v5, 6, v5"); A("s_lshl_b32 s45, s51, 5"); A("v_add3_u32 v5, v5, s45, v3"); A("v_lshlrev_b32 v5, 7, v5")
    A("v_and_b32 v6, 1, v4"); A("v_lshrrev_b32 v7, 1, v3"); A("v_xor_b32 v6, v6, v7")
    for m in range(4):
        A("v_xor_b32 v7, %d, v6" % (2 * m)); A("v_lshl_add_u32 v%d, v7, 4, v5" % (CA + m))
    TA = 28
    A("v_lshrrev_b32 v5, 1, v4"); A("v_lshlrev_b32 v5, 2, v5"); A("v_bfe_u32 v6, v1, 1, 1"); A("v_add_u32 v5, v5, v6")
    A("s_movk_i32 s45, 1088"); A("v_mul_lo_u32 v5, v5, s45")
    A("s_lshl_b32 s45, s50, 8"); A("v_add_u32 v5, s45, v5")
    A("v_and_b32 v6, 1, v4"); A("v_lshlrev_b32 v6, 3, v6"); A("v_bfe_u32 v7, v1, 2, 2"); A("v_add_u32 v6, v6, v7"); A("v_lshl_add_u32 v5, v6, 4, v5")
    A("v_and_b32 v6, 1, v1"); A("v_lshl_add_u32 v%d, v6, 3, v5" % TA)
    A("v_add_u32 v%d, %d, v%d" % (TA + 1, 6 * BLK, TA))
    A("v_lshlrev_b32 v18, 4, v1")
    A("s_mul_i32 s46, s4, %d" % CH_BYTES); A("s_lshl_b32 s47, s3, 10"); A("s_add_u32 s46, s46, s47"); A("s_add_u32 s46, s46, %d" % WS_H)
    A("s_lshl_b32 s47, s6, 15")
    A("s_mul_i32 s64, s3, 1088")
    g.stamp(1)
    A("s_waitcnt vmcnt(0)")
    for i in range(16):
        A("v_mul_f32 v%d, v%d, v%d" % (ACC + i, ACC + i, 14 + ((i >> 2) & 1)))
    for i in range(0, 16, 2):
        A("v_cvt_pk_bf16_f32 v19, v%d, v%d" % (ACC + i, ACC + i + 1))
        A("v_lshlrev_b32 v%d, 16, v19" % (ACC + i)); A("v_and_b32 v%d, 0xffff0000, v19" % (ACC + i + 1))
    A("s_barrier")
    g.stamp(2)
    for ks in range(16):
        for dtl in range(2):
            A("ds_read_b128 %s, v%d offset:%d" % (v(CREG + 8 * ks + 4 * dtl, 4), CA + (ks & 3), (ks >> 2) * 16384 + dtl * 2048))
        if ks % 4 == 3: A("s_waitcnt lgkmcnt(0)")
    for m in range(4): A("v_add_u32 v%d, %d, v%d" % (CA + m, CLDS, CA + m))
    A("s_barrier")
    g.stamp(3)
    def issue(grp):
        for b in range(3):
            slot = (grp % 3) * 3 + b
            A("s_add_u32 m0, s64, %d" % (slot * BLK))
            A("s_add_u32 s65, s46, s47")
            A("buffer_load_dwordx4 v18, s[16:19], s65 offen %s lds" % g.hload_aux)
            A("s_add_u32 s47, s47, 8192"); A("s_cmp_ge_u32 s47, %d" % CH_BYTES); A("s_cselect_b32 s45, %d, 0" % CH_BYTES); A("s_sub_u32 s47, s47, s45")
    def reads(ks):
        slot = ks % 9; buf = ks & 1
        ta, off = (TA, slot * BLK) if slot < 6 else (TA + 1, (slot - 6) * BLK)
        L = []
        for tt in range(2):
            for hh in range(2):
                L.append("ds_read_b64_tr_b16 %s, v%d offset:%d" % (v(HB[buf] + 4 * tt + 2 * hh, 2), ta, off + tt * 2176 + hh * 64))
        if ks >= 16:
            if ks >= 32: L.insert(0, "v_add_u32 v%d, 0x10000, v%d" % (CA + (ks & 3), CA + (ks & 3)))
            for dtl in range(2):
                L.append("ds_read_b128 %s, v%d offset:%d" % (v(CB[buf] + 4 * dtl, 4), CA + (ks & 3), (((ks >> 2) - 4) & 3) * 16384 + dtl * 2048))
        return L
    def mf(ks, rd):
        buf = ks & 1; rd = list(rd)
        for tt in range(2):
            for dtl in range(2):
                cb = CREG + 8 * ks + 4 * dtl if ks < 16 else CB[buf] + 4 * dtl
                ac = ACC + 8 * tt + 4 * dtl
                A("v_mfma_f32_16x16x32_bf16 %s, %s, %s, %s" % (v(ac, 4), v(HB[buf] + 4 * tt, 4), v(cb, 4), v(ac, 4)))
                for _ in range(2):
                    if rd: A(rd.pop(0))
    issue(0); issue(1); issue(2)
    A("s_waitcnt vmcnt(6)")
    A("s_barrier")
    g.stamp(4)
    for r in reads(0): A(r)
    for grp in range(12):
        for b in range(3):
            ks = 3 * grp + b
            A("s_waitcnt lgkmcnt(0)")
            if b == 2 and grp < 11:
                A("s_waitcnt vmcnt(%d)" % (3 if grp < 10 else 0))
                A("s_barrier")
                if grp + 3 < 12: issue(grp + 3)
            mf(ks, reads(ks + 1) if ks < 35 else [])
    g.stamp(5)
    for tt in range(2):
        for r in range(4):
            for dtl in range(2):
                A("buffer_store_dword v%d, v17, s[24:27], s%d offen offset:%d" % (ACC + 8 * tt + 4 * dtl + r, 56 + 4 * tt + r, dtl * 64))
    if g.stamps:
        A("s_waitcnt vmcnt(0)")
        g.stamp(6)
        A("s_cmp_lg_u32 s3, 0"); A("s_cbranch_scc1 %s" % Lend)
        A("s_add_u32 s2, s2, 256")
        g.write_stamps(7, 2, 16, Lend)

NA = 72
USTR = 4640; UT = 0
SEQ0 = 8 * USTR
SEQSTR = 9216; SROW = 528
KA0 = SEQ0 + 8 * SEQSTR
KASTR = 4096
K_C0, K_C1, K_R2, K_R3 = 0, 1216, 2560, 3072
A_LDS = KA0 + 8 * KASTR

def emit_A(g, name):
    A = g.A
    kernel_begin(A, name)
    g.stamp(0)
    Lend = name + "_end"
    A("s_cmp_ge_u32 s2, %d" % NA); A("s_cbranch_scc1 %s" % Lend)
    A("s_mov_b32 s4, s2")
    a_body(g, name)
    A(Lend + ":")
    A("s_endpgm")

def a_body(g, name):
    A = g.A
    Lend = name + "_end"
    A("s_load_dwordx16 s[8:23], s[0:1], 0")
    A("s_load_dwordx2 s[24:25], s[0:1], %d" % KOFF["A_Dskip"])
    A("s_load_dwordx2 s[26:27], s[0:1], %d" % KOFF["out"])
    A("s_load_dwordx2 s[28:29], s[0:1], %d" % KOFF["ws"])
    A("v_lshrrev_b32 v2, 6, v0"); A("v_and_b32 v1, 63, v0")
    A("v_readfirstlane_b32 s3, v2")
    A("s_and_b32 s5, s4, 7"); A("s_lshr_b32 s6, s4, 3"); A("s_mul_i32 s5, s5, 9"); A("s_add_u32 s5, s5, s6")
    A("s_lshl_b32 s7, s5, 3"); A("s_add_u32 s7, s7, s3")
    A("v_and_b32 v3, 15, v1"); A("v_lshrrev_b32 v4, 4, v1")
    A("s_lshl_b32 s30, s7, 8"); A("v_lshl_add_u32 v5, v1, 2, s30")
    A("s_lshl_b32 s30, s7, 1"); A("v_mov_b32 v6, s30")
    A("s_lshl_b32 s30, s6, 6"); A("v_add_u32 v7, s30, v0"); A("v_and_b32 v7, 511, v7")
    A("s_movk_i32 s31, 4608"); A("v_mul_lo_u32 v8, v7, s31"); A("s_lshl_b32 s30, s5, 4"); A("v_add_u32 v8, s30, v8")
    A("s_waitcnt lgkmcnt(0)")
    PR = 10
    for i in range(6): A("global_load_dword v%d, v5, s[%d:%d]" % (PR + i, 10 + 2 * i, 11 + 2 * i))
    A("global_load_ushort v16, v6, s[22:23]"); A("global_load_ushort v17, v6, s[24:25]")
    UR = 232
    srd(A, 32, 8, 2048 * 1152); srd(A, 36, 26, 2048 * 4608); srd(A, 40, 28, 0x10000000)
    for n in range(4): A("buffer_load_dwordx4 %s, v8, s[32:35], 0 offen offset:%d" % (v(UR + 4 * n, 4), n * 1152))
    for i in range(4): A("v_mov_b32 v%d, 0" % (20 + i))
    A("s_mul_i32 s30, s3, %d" % KASTR); A("s_add_u32 s44, s30, %d" % KA0)
    A("v_lshl_add_u32 v9, v1, 4, s44")
    for i in range(4): A("ds_write_b128 v9, v[20:23] offset:%d" % (1024 * i))
    A("s_mul_i32 s45, s3, %d" % USTR)
    A("v_lshl_add_u32 v9, v1, 3, s45"); A("ds_write_b64 v9, v[20:21]")
    A("s_mul_i32 s46, s3, %d" % SEQSTR); A("s_add_u32 s46, s46, %d" % SEQ0)
    KF, FIX, F3, F2, BAND, ACC, UB, UO, BOX, X3, X2 = 64, 132, 136, 152, 176, 32, 200, 224, 228, 20, 24
    bands = [(3, 5, 16), (6, 10, 16), (11, 13, 16), (14, 18, 24), (5, 11, 16), (12, 20, 24), (3, 4, 16)]
    A("v_lshlrev_b32 v18, 3, v4")
    A("s_mov_b32 s47, 0x3f800000"); A("s_mov_b32 s48, 0xffff0000")
    for bi, (lo, hi, W) in enumerate(bands):
        dst = BAND + 4 * bi if bi < 6 else FIX
        A("v_add_u32 v19, %d, v3" % (W - hi)); A("v_lshlrev_b32 v19, v19, %s" % ("v24"))
        A.lines.pop()
        A("s_movk_i32 s30, %d" % ((1 << (hi - lo + 1)) - 1)); A("v_lshlrev_b32 v19, v19, s30"); A("v_lshrrev_b32 v19, v18, v19")
        for q in range(4):
            A("v_bfe_i32 v24, v19, %d, 1" % (2 * q)); A("v_bfe_i32 v25, v19, %d, 1" % (2 * q + 1))
            A("v_and_b32 v24, %s, v24" % ("0x3f80" if bi < 6 else "0xffff"))
            A("v_and_or_b32 v%d, v25, s%d, v24" % (dst + q, 47 if bi < 6 else 48))
    g.stamp(1)
    A("s_waitcnt vmcnt(4)")
    AR, AI, BR, BI, CR, CI = 32, 34, 36, 38, 40, 42
    for i, d in enumerate((AR, AI, BR, BI, CR, CI)):
        A("v_lshlrev_b32 v%d, 16, v%d" % (d, PR + i)); A("v_and_b32 v%d, 0xffff0000, v%d" % (d + 1, PR + i))
    A("v_lshlrev_b32 v16, 16, v16"); A("v_lshlrev_b32 v17, 16, v17")
    A("v_mul_f32 v16, 0x%x, v16" % LOG2E); A("v_exp_f32 v16, v16")
    A("v_cvt_pk_bf16_f32 v16, v16, v16"); A("v_and_b32 v16, 0xffff0000, v16")
    for d in (AR, AR + 1, AI, AI + 1, BR, BR + 1, BI, BI + 1): A("v_mul_f32 v%d, v16, v%d" % (d, d))
    for d in (AR, AR + 1): A("v_mul_f32 v%d, 0x%x, v%d" % (d, LOG2E, d))
    for d in (AI, AI + 1): A("v_mul_f32 v%d, 0x%x, v%d" % (d, INV2PI, d))
    N3 = " neg_lo:[1,0,0] neg_hi:[1,0,0]"
    def cmul(d, a_, b_):
        A("v_pk_mul_f32 %s, %s, %s" % (v(d, 2), v(a_, 2), v(b_, 2)))
        A("v_pk_mul_f32 %s, %s, %s" % (v(d + 2, 2), v(a_, 2), v(b_ + 2, 2)))
        A("v_pk_fma_f32 %s, %s, %s, %s%s" % (v(d, 2), v(a_ + 2, 2), v(b_ + 2, 2), v(d, 2), N3))
        A("v_pk_fma_f32 %s, %s, %s, %s" % (v(d + 2, 2), v(a_ + 2, 2), v(b_, 2), v(d + 2, 2)))
    def anchor(d, m):
        for k in range(2):
            if m == 1:
                A("v_exp_f32 v24, v%d" % (AR + k)); A("v_fract_f32 v25, v%d" % (AI + k))
            else:
                A("v_mul_f32 v24, %s, v%d" % (f32hex(m), AR + k)); A("v_mul_f32 v25, %s, v%d" % (f32hex(m), AI + k))
                A("v_exp_f32 v24, v24"); A("v_fract_f32 v25, v25")
            A("v_cos_f32 v%d, v25" % (d + k)); A("v_sin_f32 v%d, v25" % (d + 2 + k))
            A("v_mul_f32 v%d, v24, v%d" % (d + k, d + k)); A("v_mul_f32 v%d, v24, v%d" % (d + 2 + k, d + 2 + k))
    Z1, Z16, Z256 = 44, 48, 52
    TA_, TB_ = 56, 60
    EV = 96
    PF = 64
    QF = 200
    D0, D1, D2 = 136, 140, 144
    SW, SRD_, SR1, SR2 = 26, 27, 28, 29
    A("v_lshl_add_u32 v%d, v1, 3, s46" % SW)
    A("s_movk_i32 s30, %d" % SROW)
    A("v_lshl_add_u32 v24, v4, 4, s46")
    A("v_mad_u32_u24 v%d, v3, s30, v24" % SRD_)
    A("v_sub_u32 v25, 15, v3"); A("v_mad_u32_u24 v%d, v25, s30, v24" % SR1)
    A("v_and_b32 v30, 3, v25"); A("v_max_u32 v30, 1, v30"); A("v_lshrrev_b32 v25, 2, v25"); A("v_lshl_add_u32 v25, v25, 1, v30"); A("v_add_u32 v25, -1, v25")
    A("v_mad_u32_u24 v%d, v25, s30, v24" % SR2)
    wtmp = [148, 150]
    wn = [0]
    def put(row, q, neg=False):
        w = wtmp[wn[0] & 1]; wn[0] += 1
        A("v_cvt_pk_bf16_f32 v%d, v%d, v%d" % (w, q, q + 1))
        A("v_cvt_pk_bf16_f32 v%d, %sv%d, %sv%d" % (w + 1, "-" if neg else "", q + 2, "-" if neg else "", q + 3))
        A("ds_write_b64 v%d, %s offset:%d" % (SW, v(w, 2), row * SROW))
    def frags(dst, addr):
        A("s_waitcnt lgkmcnt(0)")
        for k in range(8): A("ds_read_b128 %s, v%d offset:%d" % (v(dst + 4 * k, 4), addr, 64 * k))
    def kmf(d):
        for k in range(8):
            A("s_waitcnt lgkmcnt(%d)" % (7 - k))
            A("v_mfma_f32_16x16x32_bf16 %s, %s, %s, %s" % (v(d, 4), v(QF + 4 * k, 4), v(PF + 4 * k, 4), v(d, 4) if k else "0"))
    g.stamp(1, "kgen")
    cmul(TA_, CR, BR)
    anchor(Z16, 16.0)
    cur, oth = TA_, TB_
    for i in range(16):
        put(i, cur, neg=True)
        if i < 15:
            cmul(oth, cur, Z16); cur, oth = oth, cur
    g.stamp(2, "kgen")
    frags(PF, SRD_)
    anchor(Z1, 1); anchor(Z256, 256.0)
    A("v_mov_b32 v%d, 1.0" % TA_); A("v_mov_b32 v%d, 1.0" % (TA_ + 1)); A("v_mov_b32 v%d, 0" % (TA_ + 2)); A("v_mov_b32 v%d, 0" % (TA_ + 3))
    A("s_waitcnt lgkmcnt(0)")
    g.stamp(3, "kgen")
    put(0, TA_); put(1, Z1)
    prev = Z1
    for t in range(2, 16):
        d = EV + 4 * (t // 2 - 1) if t % 2 == 0 else TA_
        cmul(d, prev, Z1); put(t, d); prev = d
    g.stamp(4, "kgen")
    frags(QF, SR1)
    def ev(t): return Z16 if t == 16 else EV + 4 * (t // 2 - 1)
    Z512, Z768, Z1024 = 124, 128, 36
    cmul(Z512, Z256, Z256); cmul(Z768, Z512, Z256); cmul(Z1024, Z512, Z512)
    kmf(D0)
    g.stamp(5, "kgen")
    put(0, Z256)
    for e in range(1, 9):
        d = (TA_, TB_)[e & 1]
        cmul(d, Z256, ev(2 * e)); put(e, d)
    frags(QF, SR2)
    Z1280, Z1536, Z1792 = 40, 32, 44
    cmul(Z1280, Z1024, Z256); cmul(Z1536, Z1024, Z512); cmul(Z1792, Z1024, Z768)
    kmf(D1)
    big = [Z1024, Z1280, Z1536, Z1792]
    for rho in range(16):
        gg, r = rho >> 2, rho & 3
        if gg < 2: b_, t = big[2 * gg + (r >> 1)], 8 + 8 * (1 - (r & 1))
        else: b_, t = (Z512, Z768)[gg - 2], 4 + 4 * (3 - r)
        d = (TA_, TB_)[rho & 1]
        cmul(d, b_, ev(t)); put(rho, d)
    g.stamp(6, "kgen")
    frags(QF, SRD_)
    KW = 30
    A("v_lshlrev_b32 v24, 5, v3"); A("v_lshlrev_b32 v25, 3, v4"); A("v_sub_u32 v24, v25, v24"); A("v_add_u32 v%d, s44, v24" % KW)
    A("v_add_u32 v%d, 512, v%d" % (KW, KW))
    for d, x in ((D0, 528), (D1, 272)):
        o = 2 * x - 512
        A("v_cvt_pk_bf16_f32 v24, v%d, v%d" % (d, d + 1)); A("v_cvt_pk_bf16_f32 v25, v%d, v%d" % (d + 2, d + 3)); A("v_cvt_pk_bf16_f32 v31, v%d, v%d" % (d + 1, d + 2))
        A("ds_write_b64 v%d, v[24:25] offset:%d" % (KW, K_C0 + o))
        A("ds_write_b16 v%d, v24 offset:%d" % (KW, K_C1 + o - 2))
        A("ds_write_b32 v%d, v31 offset:%d" % (KW, K_C1 + o))
        A("ds_write_b16_d16_hi v%d, v25 offset:%d" % (KW, K_C1 + o + 4))
    A("v_cvt_pk_bf16_f32 v24, v%d, v%d" % (D1, D1)); A("v_mov_b32 v25, s44")
    A("s_mov_b64 exec, 0x8000")
    A("ds_write_b16 v25, v24 offset:%d" % (K_C0 + 58)); A("ds_write_b32 v25, v24 offset:%d" % (K_C0 + 60))
    A("ds_write_b32 v25, v24 offset:%d" % (K_C1 + 56)); A("ds_write_b16 v25, v24 offset:%d" % (K_C1 + 60))
    A("s_mov_b64 exec, -1")
    A("s_waitcnt lgkmcnt(12)")
    for k in range(8):
        A("v_mfma_f32_16x16x32_bf16 %s, %s, %s, %s" % (v(D2, 4), v(QF + 4 * k, 4), v(PF + 4 * k, 4), v(D2, 4) if k else "0"))
    A("v_lshlrev_b32 v24, 2, v3"); A("v_lshlrev_b32 v25, 7, v4"); A("v_add_u32 v24, v24, v25"); A("v_sub_u32 v24, %d, v24" % (K_R3 + 252))
    A("v_add_u32 v31, -64, v24")
    A("v_lshlrev_b32 v26, 3, v3"); A("v_add_u32 v26, v26, v25"); A("v_sub_u32 v26, %d, v26" % (K_R2 + 376 + 256))
    A("v_add_u32 v27, 4, v26")
    A("v_cmp_gt_u32 vcc, 2, v4")
    A("v_cndmask_b32 v24, v26, v24, vcc"); A("v_cndmask_b32 v31, v27, v31, vcc")
    A("v_add_u32 v24, s44, v24"); A("v_add_u32 v31, s44, v31")
    A("v_cvt_pk_bf16_f32 v26, v%d, v%d" % (D2, D2 + 1)); A("v_cvt_pk_bf16_f32 v27, v%d, v%d" % (D2 + 2, D2 + 3))
    A("ds_write_b32 v24, v26"); A("ds_write_b32 v31, v27")
    A("v_and_b32 v24, 1, v3"); A("v_cmp_eq_u32 vcc, 1, v24")
    A("v_mov_b32 v24, %d" % (K_C1 - 2)); A("v_cndmask_b32 v24, v24, %d, vcc" % K_C0) if False else None
    A("v_mov_b32 v25, %d" % K_C0); A("v_cndmask_b32 v24, v24, v25, vcc")
    A("v_lshlrev_b32 v25, 4, v4"); A("v_add_u32 v24, v24, v25"); A("v_lshlrev_b32 v25, 1, v3"); A("v_sub_u32 v24, v24, v25")
    A("v_add_u32 v24, s44, v24"); A("v_add_u32 v24, %d, v24" % (2 * (527 - 512)))
    A("v_add_u32 v25, 512, v24")
    A("v_lshlrev_b32 v26, 5, v4"); A("v_lshlrev_b32 v27, 3, v3"); A("v_sub_u32 v26, v26, v27"); A("v_lshrrev_b32 v27, 1, v26") if False else None
    A("v_add_u32 v26, s44, v26"); A("v_add_u32 v26, %d, v26" % (K_R2 + 120))
    A("v_lshlrev_b32 v27, 4, v4"); A("v_lshlrev_b32 v28, 2, v3"); A("v_sub_u32 v27, v27, v28"); A("v_add_u32 v27, s44, v27"); A("v_add_u32 v27, %d, v27" % (K_R3 + 60))
    A("v_mov_b32 v28, s44")
    A("s_waitcnt lgkmcnt(0)")
    for s_ in range(17):
        ad, o = (24, 16 * (16 - s_)) if s_ > 8 else (25, 16 * (8 - s_))
        A("ds_read2_b32 %s, v%d offset0:%d offset1:%d" % (v(KF + 4 * s_, 2), ad, o, o + 1))
        A("ds_read2_b32 %s, v%d offset0:%d offset1:%d" % (v(KF + 4 * s_ + 2, 2), ad, o + 2, o + 3))
    for dl in (2, 3, 4):
        for op in range(2):
            o = (128 * (4 - dl) + 16 * op) // 8
            A("ds_read2_b64 %s, v26 offset0:%d offset1:%d" % (v(F2 + 8 * (dl - 2) + 4 * op, 4), o, o + 1))
    for dl in (4, 5, 6, 7):
        o = 16 * (7 - dl)
        A("ds_read2_b32 %s, v27 offset0:%d offset1:%d" % (v(F3 + 4 * (dl - 4), 2), o, o + 1))
        A("ds_read2_b32 %s, v27 offset0:%d offset1:%d" % (v(F3 + 4 * (dl - 4) + 2, 2), o + 2, o + 3))
    A("ds_read_u16 v29, v28 offset:%d" % (K_R2 + 128))
    g.stamp(2); g.stamp(7, "kgen")
    A("s_mov_b32 s30, 0x05040100"); A("s_mov_b32 s31, 0x07060302")
    A("v_lshlrev_b32 v9, 3, v7")
    A("s_waitcnt vmcnt(0)")
    g.stamp(3)
    TP = 200
    for c8 in range(8):
        t = TP + 2 * c8
        A("v_perm_b32 v%d, v%d, v%d, s%d" % (t, UR + 4 + (c8 >> 1), UR + (c8 >> 1), 30 + (c8 & 1)))
        A("v_perm_b32 v%d, v%d, v%d, s%d" % (t + 1, UR + 12 + (c8 >> 1), UR + 8 + (c8 >> 1), 30 + (c8 & 1)))
        A("ds_write_b64 v9, %s offset:%d" % (v(t, 2), c8 * USTR + 512))
    for i in range(32): A("v_mov_b32 v%d, 0" % (ACC + i))
    UA = 5
    A("v_lshlrev_b32 v%d, 5, v3" % UA); A("v_lshl_add_u32 v%d, v4, 4, v%d" % (UA, UA)); A("v_add_u32 v%d, s45, v%d" % (UA, UA))
    A("s_waitcnt lgkmcnt(0)")
    A("v_lshl_or_b32 v29, v29, 16, v29")
    for q in range(4): A("v_and_b32 v%d, v29, v%d" % (FIX + q, FIX + q))
    A("s_barrier")
    g.stamp(4)
    NU_, DEP = 6, 4
    def ureg(w): return UB + 4 * ((w + 7) % NU_)
    pend = []
    def rd(tag, txt):
        A(txt); pend.append(tag)
    def need(tag):
        if tag in pend:
            i = pend.index(tag)
            A("s_waitcnt lgkmcnt(%d)" % (len(pend) - 1 - i))
            del pend[:i + 1]
    def rdu(w):
        rd(("u", w), "ds_read_b128 %s, v%d offset:%d" % (v(ureg(w), 4), UA, 32 + 64 * (w + 7)))
        if w % 8 == 0 and 0 <= w <= 40:
            rd(("o", w), "ds_read_b128 %s, v%d offset:%d" % (v(UO, 4), UA, 16 + 64 * (w + 7)))
    def mf(acc, a_, b_, zero=False):
        A("v_mfma_f32_16x16x32_bf16 %s, %s, %s, %s" % (v(acc, 4), v(a_, 4), v(b_, 4), "0" if zero else v(acc, 4)))
    for w in range(-7, -7 + DEP): rdu(w)
    later = {}
    for w in range(-7, 57):
        need(("u", w))
        T = -((-w) // 8)
        u = ureg(w)
        L = []
        for T_, s_ in ((T, 8 * T - w), (T + 1, 8 * T + 8 - w), (T + 2, 8 * T + 16 - w)):
            if T_ <= 7 and s_ <= 16: L.append((ACC + 4 * T_, KF + 4 * s_, u))
        if w in (0, 8, 16, 24): L.append((ACC + 4 * (w // 8 + 4), FIX, u))
        mf(*L[0])
        if w + DEP <= 56: rdu(w + DEP)
        for m in L[1:]: mf(*m)
        if w % 8 == 0 and 0 <= w <= 40:
            sg = w // 8
            need(("o", w))
            for bi in range(6 if sg <= 3 else 4):
                mf(BOX + 4 * bi, UO if bands[bi][2] == 24 else u, BAND + 4 * bi, zero=True)
            cv = []
            for op in range(2):
                for rr in range(2):
                    r = 2 * op + rr
                    cv.append("v_cvt_pk_bf16_f32 v%d, v%d, v%d" % (X2 + 4 * op + 2 * rr, BOX + 12 + r, BOX + 8 + r))
                    cv.append("v_cvt_pk_bf16_f32 v%d, v%d, v%d" % (X2 + 4 * op + 2 * rr + 1, BOX + 4 + r, BOX + r))
            if sg <= 3:
                for r in range(4): cv.append("v_cvt_pk_bf16_f32 v%d, v%d, v%d" % (X3 + r, BOX + 20 + r, BOX + 16 + r))
            later[w + 2] = cv[:6]; later[w + 3] = cv[6:]
            far = []
            for dl in (2, 3, 4):
                if sg + dl <= 7:
                    for op in range(2): far.append((ACC + 4 * (sg + dl), X2 + 4 * op, F2 + 8 * (dl - 2) + 4 * op))
            if sg <= 3:
                for dl in (4, 5, 6, 7):
                    if sg + dl <= 7: far.append((ACC + 4 * (sg + dl), X3, F3 + 4 * (dl - 4)))
            for i, m in enumerate(far): later.setdefault(w + 4 + i % 4, []).append(m)
        for it in later.pop(w, []):
            if isinstance(it, str): A(it)
            else: mf(*it)
    assert not later
    g.stamp(5)
    EA_ = 6
    A("v_lshlrev_b32 v%d, 5, v3" % EA_); A("v_lshl_add_u32 v%d, v4, 3, v%d" % (EA_, EA_)); A("v_add_u32 v%d, s45, v%d" % (EA_, EA_))
    EU = 64
    for T in range(8): A("ds_read_b64 %s, v%d offset:%d" % (v(EU + 2 * T, 2), EA_, 512 + 512 * T))
    A("v_mov_b32 v18, v17")
    A("v_mov_b32 v16, v17")
    for T in range(8):
        t = 96 + 8 * (T & 1); ac = ACC + 4 * T
        A("v_cvt_pk_bf16_f32 v%d, v%d, v%d" % (ac, ac, ac + 1)); A("v_cvt_pk_bf16_f32 v%d, v%d, v%d" % (ac + 2, ac + 2, ac + 3))
        A("v_and_b32 v%d, 0xffff0000, v%d" % (ac + 1, ac)); A("v_lshlrev_b32 v%d, 16, v%d" % (ac, ac))
        A("v_and_b32 v%d, 0xffff0000, v%d" % (ac + 3, ac + 2)); A("v_lshlrev_b32 v%d, 16, v%d" % (ac + 2, ac + 2))
        A("s_waitcnt lgkmcnt(%d)" % (7 - T + T if False else 0)) if T == 0 else None
        for h in range(2):
            A("v_lshlrev_b32 v%d, 16, v%d" % (t + 2 * h, EU + 2 * T + h)); A("v_and_b32 v%d, 0xffff0000, v%d" % (t + 2 * h + 1, EU + 2 * T + h))
            A("v_pk_mul_f32 %s, %s, v[16:17]" % (v(t + 2 * h, 2), v(t + 2 * h, 2)))
            A("v_cvt_pk_bf16_f32 v%d, v%d, v%d" % (t + 2 * h, t + 2 * h, t + 2 * h + 1))
            A("v_and_b32 v%d, 0xffff0000, v%d" % (t + 2 * h + 1, t + 2 * h)); A("v_lshlrev_b32 v%d, 16, v%d" % (t + 2 * h, t + 2 * h))
            A("v_pk_add_f32 %s, %s, %s" % (v(t + 2 * h, 2), v(t + 2 * h, 2), v(ac + 2 * h, 2)))
            A("v_cvt_pk_bf16_f32 v%d, v%d, v%d" % (t + 4 + h, t + 2 * h, t + 2 * h + 1))
        A("ds_write_b64 v%d, %s offset:%d" % (EA_, v(t + 4, 2), 512 + 512 * T))
    A("v_lshrrev_b32 v8, 1, v0"); A("v_and_b32 v9, 1, v0")
    A("s_movk_i32 s30, %d" % (4 * USTR)); A("v_mul_lo_u32 v10, v9, s30"); A("v_lshl_add_u32 v10, v8, 4, v10")
    A("s_mov_b32 s30, %d" % (8 * 4608)); A("v_mul_lo_u32 v11, v8, s30"); A("v_lshl_add_u32 v11, v9, 4, v11"); A("s_lshl_b32 s30, s5, 5"); A("v_add_u32 v11, s30, v11")
    for e in range(8): A("s_mov_b32 s%d, %d" % (50 + e, e * 4608))
    A("s_waitcnt lgkmcnt(0)")
    A("s_barrier")
    g.stamp(6)
    for cc in range(4): A("ds_read_b128 %s, v10 offset:%d" % (v(64 + 4 * cc, 4), cc * USTR + 512))
    A("s_waitcnt lgkmcnt(0)")
    for e in range(8):
        for cc in range(4):
            src = 64 + 4 * cc + (e >> 1)
            if e & 1: A("v_and_b32 v%d, 0xffff0000, v%d" % (96 + 4 * e + cc, src))
            else: A("v_lshlrev_b32 v%d, 16, v%d" % (96 + 4 * e + cc, src))
        A("buffer_store_dwordx4 %s, v11, s[36:39], s%d offen" % (v(96 + 4 * e, 4), 50 + e))
    if g.stamps:
        A("s_waitcnt vmcnt(0)")
        g.stamp(7)
        A("s_and_b32 s5, s3, 3"); A("s_cmp_lg_u32 s5, 0"); A("s_cbranch_scc1 %s" % Lend)
        A("s_mul_i32 s5, s3, 75"); A("s_add_u32 s4, s4, s5")
        A("s_add_u32 s4, s4, 144")
        g.write_stamps(8, 4, 40, Lend)

def finish(g, launches, kds):
    lines, n = hazard.fix(g.A.lines)
    return file_text(launches, "\n".join(lines) + "\n", kds)

def build3(stamps, path):
    g = G(stamps=stamps); g.hstore_aux = ""; g.hload_aux = ""
    emit_A(g, "a_kernel"); emit_B1(g, "b1_kernel"); emit_B2(g, "b2_kernel")
    open(path, "w").write(finish(g, [("a_kernel", NA, 512, A_LDS), ("b1_kernel", NB, 512, 163840), ("b2_kernel", NB, 512, 163840)],
        [kd("a_kernel", 256, 100, 256), kd("b1_kernel", 256, 100, 256), kd("b2_kernel", 256, 100, 256)]))

if __name__ == "__main__":
    build3(False, "concat_heads__ssm_conv_s4__ssm_conv_s5__prompt.s")
```

```python
import sys, struct
from asmlib import *
import hazard

LOG2E = 0x3fb8aa3b
INV2PI = 0x3e22f983
WS_F = 0x400
WS_E = 0x2000
WS_H = 0x100000
CH_BYTES = 36 * 8192
NB = 144
NA = 72
KNAME = "concat_heads__ssm_conv_s4__ssm_conv_s5__prompt_kernel"

class G:
    def __init__(self, stamps=False, **opt):
        self.A = Asm(); self.stamps = stamps; self.opt = opt
    def stamp(self, i, grp=None):
        if not self.stamps: return
        if (grp or "std") != self.opt.get("stgrp", "std") and i != 0: return
        self.A("s_memrealtime s[%d:%d]" % (84 + 2 * i, 85 + 2 * i))
    def write_stamps(self, rec_sreg, ws_srd):
        if not self.stamps: return
        A = self.A
        A("s_waitcnt lgkmcnt(0)")
        A("s_mov_b64 exec, 1")
        A("s_lshl_b32 s82, s%d, 6" % rec_sreg); A("s_add_u32 s82, s82, %d" % STAMP_OFF); A("v_mov_b32 v1, s82")
        for i in range(8):
            A("v_mov_b32 v2, s%d" % (84 + 2 * i)); A("v_mov_b32 v3, s%d" % (85 + 2 * i))
            A("buffer_store_dwordx2 v[2:3], v1, s[%d:%d], 0 offen offset:%d" % (ws_srd, ws_srd + 3, 8 * i))
            A("s_nop 1")

def f32hex(x):
    return "0x%08x" % struct.unpack("<I", struct.pack("<f", x))[0]

def cexp(A, dre, dim, er, ei, m, t0, t1):
    if m is None:
        A("v_exp_f32 v%d, v%d" % (t0, er)); A("v_fract_f32 v%d, v%d" % (t1, ei))
    else:
        A("v_mul_f32 v%d, %s, v%d" % (t0, m, er)); A("v_mul_f32 v%d, %s, v%d" % (t1, m, ei))
        A("v_exp_f32 v%d, v%d" % (t0, t0)); A("v_fract_f32 v%d, v%d" % (t1, t1))
    A("v_cos_f32 v%d, v%d" % (dre, t1)); A("v_sin_f32 v%d, v%d" % (dim, t1))
    A("v_mul_f32 v%d, v%d, v%d" % (dre, t0, dre)); A("v_mul_f32 v%d, v%d, v%d" % (dim, t0, dim))

def cfma(A, d, a, b, c):
    A("v_fma_f32 v%d, v%d, v%d, v%d" % (d[0], a[0], b[0], c[0])); A("v_fma_f32 v%d, v%d, v%d, v%d" % (d[1], a[0], b[1], c[1]))
    A("v_fma_f32 v%d, -v%d, v%d, v%d" % (d[0], a[1], b[1], d[0])); A("v_fma_f32 v%d, v%d, v%d, v%d" % (d[1], a[1], b[0], d[1]))
def P(r): return (r, r + 1)

LO = "op_sel:[0,0,0] op_sel_hi:[0,1,1]"; HI = "op_sel:[1,0,0] op_sel_hi:[1,1,1]"; NEG = " neg_lo:[1,0,0] neg_hi:[1,0,0]"
LO2 = "op_sel:[0,0] op_sel_hi:[0,1]"; HI2 = "op_sel:[1,0] op_sel_hi:[1,1]"; NEG2 = " neg_lo:[1,0] neg_hi:[1,0]"

def b_role(g):
    A = g.A
    A("s_load_dwordx2 s[20:21], s[0:1], %d" % KOFF["B_x"])
    A("s_load_dwordx4 s[24:27], s[0:1], %d" % KOFF["B_Lambda_re"])
    A("s_load_dwordx8 s[28:35], s[0:1], %d" % KOFF["B_B_re"])
    A("s_load_dwordx8 s[36:43], s[0:1], %d" % KOFF["B_log_dt"])
    A("s_load_dwordx2 s[22:23], s[0:1], %d" % KOFF["ws"])
    A("s_and_b32 s4, s2, 7"); A("s_lshr_b32 s5, s2, 3")
    A("s_cmp_ge_u32 s5, 9"); A("s_cselect_b32 s6, 1, 0")
    A("s_lshl_b32 s4, s4, 1"); A("s_add_u32 s4, s4, s6")
    A("s_mul_i32 s7, s6, 9"); A("s_sub_u32 s5, s5, s7")
    A("s_add_u32 s6, s5, s4")
    for _ in range(2):
        A("s_cmp_ge_u32 s6, 9"); A("s_cselect_b32 s7, 9, 0"); A("s_sub_u32 s6, s6, s7")
    A("s_waitcnt lgkmcnt(0)")
    srd(A, 16, 22, 0x10000000)
    A("s_cmp_ge_u32 s3, 4"); A("s_cbranch_scc1 L_bload")
    b_compute(g)
    A("L_bload:")
    b_loader(g)

def b_compute(g):
    A = g.A
    ACR, ACI, BUF = 64, 96, (128, 168)
    LAM, KAP, L16, MU, NU, LG = 20, 22, 24, 26, 28, 30
    XA, BA = 32, 36
    A("v_and_b32 v3, 15, v1"); A("v_lshrrev_b32 v4, 4, v1")
    A("s_lshl_b32 s44, s5, 6"); A("s_lshl_b32 s45, s3, 4"); A("s_add_u32 s44, s44, s45")
    A("v_add_u32 v5, s44, v3"); A("v_lshlrev_b32 v6, 1, v5")
    A("global_load_ushort v8, v6, s[24:25]"); A("global_load_ushort v9, v6, s[26:27]"); A("global_load_ushort v10, v6, s[36:37]")
    A("v_mov_b32 v17, 0"); A("buffer_load_dword v18, v17, s[16:19], 0 offen sc1")
    A("s_barrier")
    A("v_lshrrev_b32 v7, 1, v3"); A("v_xor_b32 v7, v7, v4"); A("v_lshlrev_b32 v7, 4, v7"); A("v_lshl_add_u32 v%d, v3, 7, v7" % XA)
    A("v_xor_b32 v%d, 64, v%d" % (XA + 1, XA))
    for i in range(2, 4): A("v_add_u32 v%d, 0x10000, v%d" % (XA + i, XA + i - 2))
    A("s_lshl_b32 s45, s3, 11")
    for i in range(4): A("v_add_u32 v%d, s45, v%d" % (BA + i, XA + i))
    A("s_waitcnt vmcnt(0)")
    A("v_add_u32 v18, 1, v18")
    A("v_lshlrev_b32 v8, 16, v8"); A("v_lshlrev_b32 v9, 16, v9"); A("v_lshlrev_b32 v10, 16, v10")
    A("v_mul_f32 v10, 0x%x, v10" % LOG2E); A("v_exp_f32 v10, v10")
    A("v_cvt_pk_bf16_f32 v10, v10, v10"); A("v_and_b32 v10, 0xffff0000, v10")
    A("v_mul_f32 v11, v10, v8"); A("v_mul_f32 v12, v10, v9")
    A("v_mul_f32 v11, 0x%x, v11" % LOG2E); A("v_mul_f32 v12, 0x%x, v12" % INV2PI)
    cexp(A, LAM, LAM + 1, 11, 12, None, 13, 14)
    cexp(A, L16, L16 + 1, 11, 12, f32hex(16.0), 13, 14)
    cexp(A, MU, MU + 1, 11, 12, f32hex(32.0), 13, 14)
    cexp(A, NU, NU + 1, 11, 12, f32hex(128.0), 13, 14)
    A("v_lshlrev_b32 v15, 5, v4"); A("v_cvt_f32_u32 v15, v15")
    cexp(A, LG, LG + 1, 11, 12, "v15", 13, 14)
    A("v_add_f32 v13, -1.0, v%d" % LAM)
    A("v_mul_f32 v14, v8, v8"); A("v_fmac_f32 v14, v9, v9"); A("v_rcp_f32 v14, v14"); A("v_add_f32 v14, v14, v14")
    A("v_mul_f32 v15, v13, v8"); A("v_fmac_f32 v15, v%d, v9" % (LAM + 1))
    A("v_mul_f32 v16, v%d, v8" % (LAM + 1)); A("v_fma_f32 v16, -v13, v9, v16")
    A("v_mul_f32 v%d, v15, v14" % KAP); A("v_mul_f32 v%d, v16, v14" % (KAP + 1))

    def reads(stage, kk, buf):
        slot = stage % 4; hi = slot >> 1; so = (slot & 1) * 32768
        L = ["ds_read_b128 %s, v%d offset:%d" % (v(buf + 32, 4), BA + kk + 2 * hi, so + 16384),
             "ds_read_b128 %s, v%d offset:%d" % (v(buf + 36, 4), BA + kk + 2 * hi, so + 16384 + 8192)]
        for k in range(8):
            L.append("ds_read_b128 %s, v%d offset:%d" % (v(buf + 4 * k, 4), XA + kk + 2 * hi, so + 2048 * k))
        return L
    RPOS = [0, 1, 3, 4, 6, 7, 9, 10, 12, 13]
    def mfmas(buf, rd, zero=False):
        rd = list(rd); n = 0; tot = len(rd)
        for k in range(8):
            issued = min(len([p for p in RPOS if p < n]), tot)
            A("s_waitcnt lgkmcnt(%d)" % (7 - k + issued))
            for ac, bo in ((ACR, 32), (ACI, 36)):
                A("v_mfma_f32_16x16x32_bf16 %s, %s, %s, %s" % (v(ac + 4 * k, 4), v(buf + 4 * k, 4), v(buf + bo, 4), "0" if zero else v(ac + 4 * k, 4)))
                if n in RPOS and rd: A(rd.pop(0))
                n += 1
    g.stamp(1)
    A("s_barrier")
    g.stamp(2)
    for r in reads(0, 0, BUF[0]): A(r)
    for st in range(9):
        mfmas(BUF[0], reads(st, 1, BUF[1]), zero=(st == 0))
        if st < 8:
            A("s_barrier")
            mfmas(BUF[1], reads(st + 1, 0, BUF[0]))
        else:
            A("s_waitcnt lgkmcnt(0)")
            A("s_barrier")
            mfmas(BUF[1], [])
    g.stamp(3)
    ER, EI, T1, T2 = 40, 42, 44, 46
    def pr(s): return ACR + 4 * (s >> 1) + 2 * (s & 1)
    def pi(s): return ACI + 4 * (s >> 1) + 2 * (s & 1)
    er, ei = pr(0), pi(0)
    for s in range(1, 16):
        nr, ni = (ER, EI) if s & 1 else (T1, T2)
        A("v_pk_fma_f32 %s, %s, %s, %s %s" % (v(nr, 2), v(LAM, 2), v(er, 2), v(pr(s), 2), LO))
        A("v_pk_fma_f32 %s, %s, %s, %s %s" % (v(ni, 2), v(LAM, 2), v(ei, 2), v(pi(s), 2), LO))
        A("v_pk_fma_f32 %s, %s, %s, %s %s" % (v(nr, 2), v(LAM, 2), v(ei, 2), v(nr, 2), HI + NEG))
        A("v_pk_fma_f32 %s, %s, %s, %s %s" % (v(ni, 2), v(LAM, 2), v(er, 2), v(ni, 2), HI))
        er, ei = nr, ni
    EAt, EBt = (ER, EI), (ER + 1, EI + 1)
    e = [(208, 209), (210, 211), (212, 213), (214, 215)]
    cfma(A, e[0], P(L16), EAt, EBt)
    for c in range(2): A("v_mov_b32 v%d, v%d" % (e[2][c], e[0][c]))
    for c in range(2): A("v_permlane32_swap_b32 v%d, v%d" % (e[0][c], e[2][c]))
    for c in range(2):
        A("v_mov_b32 v%d, v%d" % (e[1][c], e[0][c])); A("v_mov_b32 v%d, v%d" % (e[3][c], e[2][c]))
    for c in range(2):
        A("v_permlane16_swap_b32 v%d, v%d" % (e[0][c], e[1][c])); A("v_permlane16_swap_b32 v%d, v%d" % (e[2][c], e[3][c]))
    PUB = 216
    A("v_mov_b32 v%d, v18" % (PUB + 1)); A("v_mov_b32 v%d, v18" % (PUB + 3))
    A("v_lshlrev_b32 v19, 4, v5")
    A("s_mul_i32 s46, s4, %d" % (576 * 16)); A("s_add_u32 s46, s46, %d" % WS_E)
    cfma(A, e[1], P(MU), e[0], e[1])
    cfma(A, e[2], P(MU), e[1], e[2])
    cfma(A, (PUB, PUB + 2), P(MU), e[2], e[3])
    A("s_mov_b64 exec, 0xffff")
    A("buffer_store_dwordx4 %s, v19, s[16:19], s46 offen sc1" % v(PUB, 4))
    A("s_mov_b64 exec, -1")
    g.stamp(4)
    LB = 128
    for i in range(15):
        A("v_mov_b32 v%d, 0" % (LB + 4 * i)); A("v_mov_b32 v%d, 0" % (LB + 4 * i + 2))
    def issue_lb(lab):
        A("s_mov_b32 s47, s46")
        for i in range(15):
            A("s_cmp_le_u32 s4, %d" % i); A("s_cbranch_scc1 %s" % lab)
            A("s_sub_u32 s47, s47, %d" % (576 * 16))
            A("buffer_load_dwordx4 %s, v19, s[16:19], s47 offen sc1" % v(LB + 4 * i, 4))
        A(lab + ":")
    PG = 52
    A("v_cmp_eq_u32 vcc, 1, v4"); A("v_cndmask_b32 v%d, 0, v%d, vcc" % (PG, e[0][0])); A("v_cndmask_b32 v%d, 0, v%d, vcc" % (PG + 1, e[0][1]))
    for k in (2, 3):
        A("v_cmp_eq_u32 vcc, %d, v4" % k)
        for c in range(2): A("v_cndmask_b32 v%d, v%d, v%d, vcc" % (PG + c, PG + c, e[k - 1][c]))
    TS = (48, 50, 54, 56)
    for s in range(16):
        ta, tb = (TS[0], TS[1]) if s & 1 else (TS[2], TS[3])
        A("v_pk_mul_f32 %s, %s, %s %s" % (v(ta, 2), v(KAP, 2), v(pr(s), 2), LO2))
        A("v_pk_mul_f32 %s, %s, %s %s" % (v(tb, 2), v(KAP, 2), v(pr(s), 2), HI2 + NEG2))
        A("v_pk_fma_f32 %s, %s, %s, %s %s" % (v(pr(s), 2), v(KAP, 2), v(pi(s), 2), v(ta, 2), HI + NEG))
        A("v_pk_fma_f32 %s, %s, %s, %s %s" % (v(pi(s), 2), v(KAP, 2), v(pi(s), 2), v(tb, 2), LO + NEG))
    A("s_lshl_b32 s48, s5, 2"); A("s_add_u32 s48, s48, s3")
    A("s_mul_i32 s50, s4, %d" % CH_BYTES); A("s_lshl_b32 s49, s48, 13")
    A("s_add_u32 s50, s50, s49"); A("s_add_u32 s50, s50, %d" % WS_H); A("s_add_u32 s51, s50, 4096")
    A("s_lshl_b32 s52, s4, 8"); A("s_lshl_b32 s49, s48, 2"); A("s_add_u32 s52, s52, s49"); A("s_add_u32 s52, s52, %d" % WS_F)
    A("v_lshlrev_b32 v6, 4, v1")
    A("s_mov_b32 s53, 0x8000")
    A("L_lb_retry:")
    A("s_sub_u32 s53, s53, 1"); A("s_cbranch_scc1 L_lb_out")
    issue_lb("L_lb_iss")
    A("s_waitcnt vmcnt(0)")
    A("s_mov_b64 s[48:49], -1")
    for i in range(15):
        A("s_cmp_le_u32 s4, %d" % i); A("s_cbranch_scc1 L_lb_chk")
        A("v_cmp_eq_u32 vcc, v18, v%d" % (LB + 4 * i + 1)); A("s_and_b64 s[48:49], s[48:49], vcc")
        A("v_cmp_eq_u32 vcc, v18, v%d" % (LB + 4 * i + 3)); A("s_and_b64 s[48:49], s[48:49], vcc")
    A("L_lb_chk:")
    A("s_cmp_eq_u64 s[48:49], -1"); A("s_cbranch_scc0 L_lb_retry")
    A("L_lb_out:")
    g.stamp(5)
    A("s_barrier")
    H = [P(54), P(56)]
    cur = (LB + 56, LB + 58)
    for i in range(13, -1, -1):
        d = H[i & 1]
        cfma(A, d, P(NU), cur, (LB + 4 * i, LB + 4 * i + 2))
        cur = d
    cfma(A, (T1, T2), P(LG), cur, P(PG))
    cfma(A, (T1 + 1, T2 + 1), P(L16), (T1, T2), EAt)
    A("v_pk_mul_f32 %s, %s, %s %s" % (v(ER, 2), v(KAP, 2), v(T1, 2), LO2))
    A("v_pk_mul_f32 %s, %s, %s %s" % (v(EI, 2), v(KAP, 2), v(T1, 2), HI2 + NEG2))
    A("v_pk_fma_f32 %s, %s, %s, %s %s" % (v(ER, 2), v(KAP, 2), v(T2, 2), v(ER, 2), HI + NEG))
    A("v_pk_fma_f32 %s, %s, %s, %s %s" % (v(EI, 2), v(KAP, 2), v(T2, 2), v(EI, 2), LO + NEG))
    OUT = 192
    er, ei = ER, EI
    for s in range(16):
        A("v_pk_fma_f32 %s, %s, %s, %s %s" % (v(pr(s), 2), v(LAM, 2), v(er, 2), v(pr(s), 2), LO))
        A("v_pk_fma_f32 %s, %s, %s, %s %s" % (v(pi(s), 2), v(LAM, 2), v(ei, 2), v(pi(s), 2), LO))
        A("v_pk_fma_f32 %s, %s, %s, %s %s" % (v(pr(s), 2), v(LAM, 2), v(ei, 2), v(pr(s), 2), HI))
        A("v_pk_fma_f32 %s, %s, %s, %s %s" % (v(pi(s), 2), v(LAM, 2), v(er, 2), v(pi(s), 2), HI + NEG))
        er, ei = pr(s), pi(s)
        if s & 1:
            k = s >> 1
            for pl, ac in ((0, ACR), (1, ACI)):
                A("v_cvt_pk_bf16_f32 v%d, v%d, v%d" % (OUT + 16 * pl + k, ac + 4 * k, ac + 4 * k + 2))
                A("v_cvt_pk_bf16_f32 v%d, v%d, v%d" % (OUT + 16 * pl + 8 + k, ac + 4 * k + 1, ac + 4 * k + 3))
            if k in (3, 7):
                hf = k >> 2
                for pl in (0, 1):
                    for run in (0, 1):
                        A("buffer_store_dwordx4 %s, v6, s[16:19], s%d offen offset:%d sc1" % (v(OUT + 16 * pl + 8 * run + 4 * hf, 4), 50 + run, hf * 2048 + pl * 1024))
    g.stamp(6)
    A("s_waitcnt vmcnt(0)")
    A("s_mov_b64 exec, 1")
    A("buffer_store_dword v18, v17, s[16:19], s52 offen sc1")
    g.stamp(7)
    if g.stamps:
        A("s_cmp_lg_u32 s3, 0"); A("s_cbranch_scc1 L_end")
        g.write_stamps(2, 16)
    A("s_endpgm")

def b_loader(g):
    A = g.A
    A("s_sub_u32 s44, s3, 4")
    srd(A, 8, 20, 2048 * 1152)
    A("s_cmp_ge_u32 s44, 2"); A("s_cselect_b32 s48, s30, s28"); A("s_cselect_b32 s49, s31, s29")
    srd(A, 12, 48, 576 * 1152)
    A("s_mov_b32 s45, 1152")
    A("v_lshrrev_b32 v3, 4, v1"); A("v_and_b32 v4, 7, v1"); A("v_xor_b32 v4, v4, v3"); A("v_lshlrev_b32 v4, 4, v4")
    A("v_xor_b32 v5, 64, v4")
    A("v_lshrrev_b32 v6, 5, v1"); A("v_lshlrev_b32 v6, 5, v6")
    A("v_bfe_u32 v7, v1, 3, 1"); A("v_lshl_add_u32 v6, v7, 4, v6")
    A("v_bfe_u32 v7, v1, 4, 1"); A("v_add_u32 v6, v6, v7")
    A("s_lshl_b32 s46, s4, 7"); A("s_lshl_b32 s47, s44, 2"); A("s_add_u32 s46, s46, s47")
    A("v_add_u32 v6, s46, v6"); A("v_mul_lo_u32 v6, v6, s45")
    XO, BO = 16, 20
    for n in range(4):
        A("v_add_u32 v%d, v6, v%d" % (XO + n, 4 + (n & 1)))
        if n: A("v_add_u32 v%d, %d, v%d" % (XO + n, (64 * (n & 1) + 2 * (n >> 1)) * 1152, XO + n))
    A("s_lshl_b32 s46, s5, 6"); A("s_and_b32 s47, s44, 1"); A("s_lshl_b32 s47, s47, 5"); A("s_add_u32 s47, s46, s47")
    A("v_lshrrev_b32 v6, 3, v1"); A("v_add_u32 v6, s47, v6"); A("v_mul_lo_u32 v6, v6, s45")
    for n in range(4):
        A("v_add_u32 v%d, v6, v%d" % (BO + n, 4 + (n & 1)))
        if n: A("v_add_u32 v%d, %d, v%d" % (BO + n, 8 * n * 1152, BO + n))
    A("s_lshl_b32 s50, s44, 12")
    A("s_lshl_b32 s51, s6, 7")
    def adv():
        A("s_add_u32 s51, s51, 128"); A("s_cmp_ge_u32 s51, 1152"); A("s_cselect_b32 s52, 1152, 0"); A("s_sub_u32 s51, s51, s52")
    def issue(stage):
        slot = stage % 4
        for n in range(4):
            A("s_add_u32 m0, s50, %d" % (slot * 32768 + 1024 * n))
            A("buffer_load_dwordx4 v%d, s[8:11], s51 offen lds" % (XO + n))
        for n in range(4):
            A("s_add_u32 m0, s50, %d" % (slot * 32768 + 16384 + 1024 * n))
            A("buffer_load_dwordx4 v%d, s[12:15], s51 offen lds" % (BO + n))
        adv()
    CPOS = {0: 0, 1: 16384, 2: 98304, 3: 131072, 4: 147456, 5: 32768, 6: 49152, 7: 65536, 8: 81920}
    def issue_c(stages):
        for cs in stages:
            A("s_add_u32 s51, s6, %d" % cs); A("s_cmp_ge_u32 s51, 9"); A("s_cselect_b32 s52, 9, 0"); A("s_sub_u32 s51, s51, s52"); A("s_lshl_b32 s51, s51, 7")
            for n in range(4):
                A("s_add_u32 m0, s50, %d" % (CPOS[cs] + 1024 * n))
                A("buffer_load_dwordx4 v%d, s[12:15], s51 offen lds" % (BO + n))
    issue(0)
    A("v_mov_b32 v2, 0")
    A("buffer_load_dword v15, v2, s[16:19], 0 offen sc1")
    A("s_barrier")
    issue(1)
    ACC = 32
    A("v_and_b32 v3, 31, v1"); A("v_lshrrev_b32 v4, 5, v1")
    A("v_add_u32 v10, s46, v3")
    A("s_lshl_b32 s53, s4, 7"); A("s_lshl_b32 s54, s44, 5"); A("s_add_u32 s53, s53, s54")
    A("v_lshl_add_u32 v11, v4, 2, s53")
    A("v_mul_lo_u32 v12, v11, s45"); A("v_lshl_add_u32 v12, v10, 1, v12")
    A("s_movk_i32 s54, 4608")
    A("v_mul_lo_u32 v14, v11, s54"); A("v_lshl_add_u32 v14, v10, 2, v14"); A("v_add_u32 v14, 2304, v14")
    A("v_lshlrev_b32 v13, 1, v10")
    for i in range(32): A("v_mov_b32 v%d, 0" % (ACC + i))
    A("v_mov_b32 v8, 0"); A("v_mov_b32 v9, 0")
    for st in range(9):
        A("s_waitcnt vmcnt(%d)" % (8 if st < 8 else 16))
        A("s_barrier")
        if st == 0:
            A("v_add_u32 v15, 1, v15")
            A("s_cmp_lg_u32 s3, 4"); A("s_cbranch_scc1 L_noatom")
            A("s_mov_b64 exec, 1")
            A("v_mov_b32 v6, 1")
            A("global_atomic_add v7, v2, v6, s[42:43] sc0 sc1")
            A("s_mov_b64 exec, -1")
            A("L_noatom:")
        if st + 2 <= 8: issue(st + 2)
        if st == 6:
            A("s_cmp_ge_u32 s44, 2"); A("s_cselect_b32 s48, s34, s32"); A("s_cselect_b32 s49, s35, s33")
            srd(A, 12, 48, 576 * 1152)
        if st == 7: issue_c([3, 4, 5, 6])
        if st == 8: issue_c([7, 8])
    A("s_cmp_lg_u32 s3, 4"); A("s_cbranch_scc1 L_nobump")
    A("s_mov_b64 exec, 1")
    A("v_cmp_eq_u32 vcc, %d, v7" % (NB - 1)); A("s_and_b64 exec, exec, vcc"); A("s_cbranch_execz L_nobump2")
    A("buffer_store_dword v15, v2, s[16:19], 0 offen sc1")
    A("L_nobump2:")
    A("s_mov_b64 exec, -1")
    A("L_nobump:")
    A("s_barrier")
    issue_c([0, 1, 2])
    for dtl in range(2):
        for qd in range(4):
            A("s_mov_b32 s55, %d" % (8 * qd * 1152))
            for r in range(4):
                A("buffer_load_short_d16_hi v%d, v12, s[8:11], s55 offen offset:%d" % (ACC + 16 * dtl + 4 * qd + r, r * 1152 + dtl * 64))
    A("global_load_short_d16_hi v8, v13, s[38:39]"); A("global_load_short_d16_hi v9, v13, s[38:39] offset:64")
    srd(A, 24, 40, 2048 * 4608)
    CA = 24
    A("v_bfe_u32 v6, v3, 1, 3"); A("v_xor_b32 v6, v6, v4"); A("v_lshlrev_b32 v5, 7, v3")
    for m in range(4):
        A("v_xor_b32 v7, %d, v6" % (2 * m)); A("v_lshl_add_u32 v%d, v7, 4, v5" % (CA + m))
    A("s_lshl_b32 s56, s44, 14"); A("s_cmp_ge_u32 s44, 2"); A("s_cselect_b32 s57, 65536, 0"); A("s_add_u32 s56, s56, s57")
    TA = 28
    A("v_bfe_u32 v5, v1, 4, 1"); A("v_bfe_u32 v6, v1, 1, 1"); A("v_lshl_add_u32 v5, v5, 1, v6")
    A("v_bfe_u32 v6, v1, 2, 2"); A("v_lshl_add_u32 v6, v4, 3, v6")
    A("v_lshlrev_b32 v7, 2, v5"); A("v_xor_b32 v6, v6, v7"); A("v_lshl_add_u32 v6, v5, 4, v6")
    A("v_and_b32 v7, 1, v1"); A("v_lshlrev_b32 v7, 3, v7"); A("v_lshl_add_u32 v6, v6, 4, v7")
    A("v_add_u32 v%d, s56, v6" % TA); A("v_xor_b32 v%d, 64, v%d" % (TA + 1, TA))
    HO = 30
    A("v_lshrrev_b32 v5, 4, v1"); A("v_and_b32 v6, 15, v1"); A("v_lshlrev_b32 v7, 2, v5"); A("v_xor_b32 v6, v6, v7")
    A("v_lshlrev_b32 v6, 4, v6"); A("v_lshl_add_u32 v6, v5, 11, v6"); A("s_lshl_b32 s57, s44, 8"); A("v_add_u32 v%d, s57, v6" % HO)
    A("s_mul_i32 s58, s4, %d" % CH_BYTES); A("s_add_u32 s58, s58, %d" % WS_H)
    A("s_lshl_b32 s59, s6, 15"); A("s_add_u32 s59, s59, s58"); A("s_add_u32 s60, s58, %d" % CH_BYTES)
    A("v_min_u32 v31, 35, v1"); A("v_lshlrev_b32 v31, 2, v31")
    A("s_lshl_b32 s61, s4, 8"); A("s_add_u32 s61, s61, %d" % WS_F)
    for i in range(16): A("s_mov_b32 s%d, %d" % (64 + i, (8 * (i >> 2) + (i & 3)) * 4608))
    A("s_waitcnt vmcnt(0)")
    for i in range(32): A("v_mul_f32 v%d, v%d, v%d" % (ACC + i, ACC + i, 8 + (i >> 4)))
    for i in range(0, 32, 2):
        A("v_cvt_pk_bf16_f32 v2, v%d, v%d" % (ACC + i, ACC + i + 1))
        A("v_lshlrev_b32 v%d, 16, v2" % (ACC + i)); A("v_and_b32 v%d, 0xffff0000, v2" % (ACC + i + 1))
    A("v_mov_b32 v3, v14")
    g.stamp(1)
    A("s_barrier")
    g.stamp(2)
    CREG = 64
    def cread(dst, ks, pl, dtl, base):
        return "ds_read_b128 %s, v%d offset:%d" % (v(dst, 4), CA + (ks & 3), CPOS[ks >> 2] - base + pl * 8192 + dtl * 4096)
    for ks in range(12):
        if ks == 8:
            for m in range(4): A("v_add_u32 v%d, %d, v%d" % (CA + m, 98304, CA + m))
        for pl in range(2):
            for dtl in range(2): A(cread(CREG + 16 * ks + 8 * pl + 4 * dtl, ks, pl, dtl, 0 if ks < 8 else 98304))
    for m in range(4): A("v_add_u32 v%d, %d, v%d" % (CA + m, 32768, CA + m))
    A("s_waitcnt lgkmcnt(0)")
    A("s_barrier")
    g.stamp(3)
    A("s_mov_b32 s53, 0x8000")
    A("L_fpoll:")
    A("s_sub_u32 s53, s53, 1"); A("s_cbranch_scc1 L_fout")
    A("buffer_load_dword v2, v31, s[16:19], s61 offen sc1")
    A("s_waitcnt vmcnt(0)")
    A("v_cmp_eq_u32 vcc, v2, v15"); A("s_cmp_eq_u64 vcc, -1"); A("s_cbranch_scc0 L_fpoll")
    A("L_fout:")
    g.stamp(4)
    HB = (8, 16)
    LA = 6
    def dma(ks):
        return ["s_add_u32 m0, s56, %d" % ((ks % 8) * 2048),
                "buffer_load_dwordx4 v%d, s[16:19], s59 offen sc1 lds" % HO,
                "buffer_load_dwordx4 v%d, s[16:19], s59 offen offset:1024 sc1 lds" % HO,
                "s_add_u32 s59, s59, 8192", "s_cmp_ge_u32 s59, s60", "s_cselect_b32 s59, s58, s59"]
    def cbuf(ks): return CREG + 16 * ks if ks < 12 else CREG + 16 * (ks & 1)
    def hreads(ks):
        L = []
        for pl in range(2):
            for hh in range(2):
                L.append("ds_read_b64_tr_b16 %s, v%d offset:%d" % (v(HB[ks & 1] + 4 * pl + 2 * hh, 2), TA + hh, (ks % 8) * 2048 + pl * 1024))
        return L
    def creads(ks):
        if ks < 12: return []
        L = []
        if ks == 20:
            pass
        base = 131072 if ks < 20 else 32768
        if 20 <= ks < 24: L.append("v_add_u32 v%d, %d, v%d" % (CA + (ks & 3), -98304, CA + (ks & 3)))
        for pl in range(2):
            for dtl in range(2): L.append(cread(cbuf(ks) + 8 * pl + 4 * dtl, ks, pl, dtl, base))
        return L
    for ks in range(LA):
        for x in dma(ks): A(x)
    A("s_waitcnt vmcnt(%d)" % (2 * (LA - 1)))
    for x in hreads(0): A(x)
    g.stamp(5)
    for ks in range(36):
        nxt = ks + 1
        fill = [[], [], [], []]
        if nxt < 36:
            ahead = min(LA + ks, 36) - (nxt + 1)
            cr = creads(nxt)
            fill[0] = ["s_waitcnt vmcnt(%d)" % (2 * ahead)] + hreads(nxt)
            fill[1] = cr[:3]; fill[2] = cr[3:]
        if ks + LA < 36:
            d = dma(ks + LA); fill[2] = fill[2] + d[:2]; fill[3] = d[2:]
        A("s_waitcnt lgkmcnt(0)")
        n = 0
        for pl in range(2):
            for dtl in range(2):
                A("v_mfma_f32_32x32x16_bf16 %s, %s, %s, %s" % (v(ACC + 16 * dtl, 16), v(HB[ks & 1] + 4 * pl, 4), v(cbuf(ks) + 8 * pl + 4 * dtl, 4), v(ACC + 16 * dtl, 16)))
                for x in fill[n]: A(x)
                n += 1
    g.stamp(6)
    for i in range(16):
        for dtl in range(2):
            A("buffer_store_dword v%d, v3, s[24:27], s%d offen offset:%d" % (ACC + 16 * dtl + i, 64 + i, dtl * 128))
    if g.stamps:
        A("s_waitcnt vmcnt(0)")
        g.stamp(7)
        A("s_cmp_lg_u32 s3, 4"); A("s_cbranch_scc1 L_end")
        A("s_add_u32 s2, s2, 256")
        g.write_stamps(2, 16)
    A("s_endpgm")

USTR = 4640
SEQ0 = 8 * USTR
SEQSTR = 9216; SROW = 528
KA0 = SEQ0 + 8 * SEQSTR
KASTR = 4096
K_C0, K_C1, K_R2, K_R3 = 0, 1216, 2560, 3072
BND0 = KA0 + 8 * KASTR
BANDS = [(3, 5, 16), (6, 10, 16), (11, 13, 16), (14, 18, 24), (5, 11, 16), (12, 20, 24), (3, 4, 16), (3, 4, 16)]

def a_role(g):
    A = g.A
    A("s_sub_u32 s4, s2, %d" % NB)
    A("s_load_dwordx16 s[8:23], s[0:1], 0")
    A("s_load_dwordx2 s[24:25], s[0:1], %d" % KOFF["A_Dskip"])
    A("s_load_dwordx2 s[26:27], s[0:1], %d" % KOFF["out"])
    A("s_load_dwordx2 s[28:29], s[0:1], %d" % KOFF["ws"])
    A("s_and_b32 s5, s4, 7"); A("s_lshr_b32 s6, s4, 3"); A("s_mul_i32 s5, s5, 9"); A("s_add_u32 s5, s5, s6")
    A("s_lshl_b32 s7, s5, 3"); A("s_add_u32 s7, s7, s3")
    A("v_and_b32 v3, 15, v1"); A("v_lshrrev_b32 v4, 4, v1")
    A("s_lshl_b32 s30, s7, 8"); A("v_lshl_add_u32 v5, v1, 2, s30")
    A("s_lshl_b32 s30, s7, 1"); A("v_mov_b32 v6, s30")
    A("s_movk_i32 s31, 2304"); A("s_lshl_b32 s30, s5, 4"); A("v_mov_b32 v8, s30"); A("v_mad_u32_u24 v8, v1, s31, v8")
    A("s_lshl_b32 s49, s3, 2"); A("s_lshl_b32 s30, s6, 1"); A("s_add_u32 s49, s49, s30")
    A("s_waitcnt lgkmcnt(0)")
    PR = 10
    for i in range(6): A("global_load_dword v%d, v5, s[%d:%d]" % (PR + i, 10 + 2 * i, 11 + 2 * i))
    A("global_load_ushort v16, v6, s[22:23]"); A("global_load_ushort v17, v6, s[24:25]")
    UR = 224
    srd(A, 32, 8, 2048 * 1152); srd(A, 36, 26, 2048 * 4608); srd(A, 40, 28, 0x10000000)
    A("s_cmp_lt_u32 s3, 4"); A("s_cbranch_scc1 L_a_old0")
    for p in range(4):
        A("s_add_u32 s30, s49, %d" % p); A("s_and_b32 s%d, s30, 15" % (50 + p)); A("s_mul_i32 s30, s%d, %d" % (50 + p, 128 * 1152))
        for n in range(2): A("buffer_load_dwordx4 %s, v8, s[32:35], s30 offen offset:%d" % (v(UR + 8 * p + 4 * n, 4), n * 1152))
    A("s_branch L_a_c0")
    A("L_a_old0:")
    A("s_setprio 2")
    A("L_a_c0:")
    for i in range(4): A("v_mov_b32 v%d, 0" % (20 + i))
    A("s_mul_i32 s30, s3, %d" % KASTR); A("s_add_u32 s44, s30, %d" % KA0)
    A("v_lshl_add_u32 v9, v1, 4, s44")
    for i in range(4): A("ds_write_b128 v9, v[20:23] offset:%d" % (1024 * i))
    A("s_mul_i32 s45, s3, %d" % USTR)
    A("v_lshl_add_u32 v9, v1, 3, s45"); A("ds_write_b64 v9, v[20:21]")
    A("s_mul_i32 s46, s3, %d" % SEQSTR)
    A("s_mov_b32 s30, %d" % (BANDS[0][2] - BANDS[0][1])); A("s_mov_b32 s31, %d" % ((1 << (BANDS[0][1] - BANDS[0][0] + 1)) - 1))
    for bi in range(1, 8):
        lo, hi, W = BANDS[bi]
        A("s_cmp_eq_u32 s3, %d" % bi); A("s_cselect_b32 s30, %d, s30" % (W - hi)); A("s_cselect_b32 s31, %d, s31" % ((1 << (hi - lo + 1)) - 1))
    A("s_cmp_ge_u32 s3, 6"); A("s_cselect_b32 s47, 0xffff0000, 0x3f800000") if False else None
    A("s_mov_b32 s47, 0x3f800000"); A("s_mov_b32 s48, 0xffff0000"); A("s_cmp_ge_u32 s3, 6"); A("s_cselect_b32 s47, s48, s47"); A("s_lshr_b32 s48, s47, 16")
    A("v_lshlrev_b32 v18, 3, v4")
    A("v_add_u32 v19, s30, v3"); A("v_lshlrev_b32 v19, v19, s31"); A("v_lshrrev_b32 v19, v18, v19")
    for q in range(4):
        A("v_bfe_i32 v24, v19, %d, 1" % (2 * q)); A("v_bfe_i32 v25, v19, %d, 1" % (2 * q + 1))
        A("v_and_b32 v24, s48, v24"); A("v_and_or_b32 v%d, v25, s47, v24" % (20 + q))
    A("s_lshl_b32 s30, s3, 10"); A("s_add_u32 s30, s30, %d" % BND0); A("v_lshl_add_u32 v9, v1, 4, s30"); A("ds_write_b128 v9, v[20:23]")
    KF, FIX, F3, F2, BAND, ACC, UB, UO, BOX, X3, X2 = 64, 132, 136, 152, 176, 32, 200, 224, 228, 20, 24
    SRD_, SR1, SR2 = 27, 28, 29
    A("s_movk_i32 s30, %d" % SROW); A("s_add_u32 s31, s46, %d" % SEQ0)
    A("v_lshl_add_u32 v24, v4, 4, s31")
    A("v_mad_u32_u24 v%d, v3, s30, v24" % SRD_)
    A("v_sub_u32 v25, 15, v3"); A("v_mad_u32_u24 v%d, v25, s30, v24" % SR1)
    A("v_and_b32 v30, 3, v25"); A("v_max_u32 v30, 1, v30"); A("v_lshrrev_b32 v25, 2, v25"); A("v_lshl_add_u32 v25, v25, 1, v30"); A("v_add_u32 v25, -1, v25")
    A("v_mad_u32_u24 v%d, v25, s30, v24" % SR2)
    A("s_mov_b32 m0, s46")
    g.stamp(1)
    A("s_cmp_lt_u32 s3, 4"); A("s_cbranch_scc1 L_a_w0")
    A("s_waitcnt vmcnt(8)"); A("s_branch L_a_w1")
    A("L_a_w0:"); A("s_waitcnt vmcnt(0)")
    A("L_a_w1:")
    AR, AI, BR, BI, CR, CI = 32, 34, 36, 38, 40, 42
    for i, d in enumerate((AR, AI, BR, BI, CR, CI)):
        A("v_lshlrev_b32 v%d, 16, v%d" % (d, PR + i)); A("v_and_b32 v%d, 0xffff0000, v%d" % (d + 1, PR + i))
    A("v_lshlrev_b32 v16, 16, v16"); A("v_lshlrev_b32 v17, 16, v17")
    A("v_mul_f32 v16, 0x%x, v16" % LOG2E); A("v_exp_f32 v16, v16")
    A("v_cvt_pk_bf16_f32 v16, v16, v16"); A("v_and_b32 v16, 0xffff0000, v16")
    for d in (AR, AR + 1, AI, AI + 1, BR, BR + 1, BI, BI + 1): A("v_mul_f32 v%d, v16, v%d" % (d, d))
    for d in (AR, AR + 1): A("v_mul_f32 v%d, 0x%x, v%d" % (d, LOG2E, d))
    for d in (AI, AI + 1): A("v_mul_f32 v%d, 0x%x, v%d" % (d, INV2PI, d))
    def cmul(d, a_, b_):
        A("v_pk_mul_f32 %s, %s, %s" % (v(d, 2), v(a_, 2), v(b_, 2)))
        A("v_pk_mul_f32 %s, %s, %s" % (v(d + 2, 2), v(a_, 2), v(b_ + 2, 2)))
        A("v_pk_fma_f32 %s, %s, %s, %s%s" % (v(d, 2), v(a_ + 2, 2), v(b_ + 2, 2), v(d, 2), NEG))
        A("v_pk_fma_f32 %s, %s, %s, %s" % (v(d + 2, 2), v(a_ + 2, 2), v(b_, 2), v(d + 2, 2)))
    def anchor(d, m):
        for k in range(2): cexp(A, d + k, d + 2 + k, AR + k, AI + k, None if m == 1 else f32hex(m), 24, 25)
    Z1, Z16, Z256, TA_, TB_ = 44, 48, 52, 56, 60
    EV, PF, QF = 96, 64, 192
    D0, D1, D2 = 136, 140, 144
    wtmp = [148, 150]; wn = [0]
    def put(row, q, neg=False):
        w = wtmp[wn[0] & 1]; wn[0] += 1
        sg = "-" if neg else ""
        A("v_cvt_pk_bf16_f32 v%d, v%d, v%d" % (w, q, q + 1))
        A("v_cvt_pk_bf16_f32 v%d, %sv%d, %sv%d" % (w + 1, sg, q + 2, sg, q + 3))
        A("ds_write_addtid_b32 v%d offset:%d" % (w, SEQ0 + row * SROW))
        A("ds_write_addtid_b32 v%d offset:%d" % (w + 1, SEQ0 + row * SROW + 256))
    def frags(dst, addr):
        A("s_waitcnt lgkmcnt(0)")
        for k in range(8): A("ds_read_b128 %s, v%d offset:%d" % (v(dst + 4 * k, 4), addr, 64 * k))
    def kmf(d):
        for k in range(8):
            A("s_waitcnt lgkmcnt(%d)" % (7 - k))
            A("v_mfma_f32_16x16x32_bf16 %s, %s, %s, %s" % (v(d, 4), v(QF + 4 * k, 4), v(PF + 4 * k, 4), v(d, 4) if k else "0"))
    def ublock(tag):
        if g.opt.get("upos", 1) != tag: return
        A("s_cmp_lt_u32 s3, 4"); A("s_cbranch_scc1 L_a_nou")
        A("s_mov_b32 s30, 0x05040100"); A("s_mov_b32 s31, 0x07060302")
        A("s_waitcnt vmcnt(0)")
        g.stamp(2)
        for p in range(4):
            A("s_lshl_b32 m0, s%d, 8" % (50 + p))
            for c8 in range(8):
                t = 24 + (c8 & 1)
                A("v_perm_b32 v%d, v%d, v%d, s%d" % (t, UR + 8 * p + 4 + (c8 >> 1), UR + 8 * p + (c8 >> 1), 30 + (c8 & 1)))
                A("ds_write_addtid_b32 v%d offset:%d" % (t, c8 * USTR + 512))
        A("s_mov_b32 m0, s46")
        A("s_waitcnt lgkmcnt(0)")
        A("s_barrier")
        g.stamp(3)
        A("L_a_nou:")
    ublock(0)
    cmul(TA_, CR, BR)
    anchor(Z16, 16.0)
    cur, oth = TA_, TB_
    for i in range(16):
        put(i, cur, neg=True)
        if i < 15:
            cmul(oth, cur, Z16); cur, oth = oth, cur
    frags(PF, SRD_)
    anchor(Z1, 1); anchor(Z256, 256.0)
    A("v_mov_b32 v%d, 1.0" % TA_); A("v_mov_b32 v%d, 1.0" % (TA_ + 1)); A("v_mov_b32 v%d, 0" % (TA_ + 2)); A("v_mov_b32 v%d, 0" % (TA_ + 3))
    A("s_waitcnt lgkmcnt(0)")
    ublock(1)
    put(0, TA_); put(1, Z1)
    prev = Z1
    for t in range(2, 16):
        d = EV + 4 * (t // 2 - 1) if t % 2 == 0 else TA_
        cmul(d, prev, Z1); put(t, d); prev = d
    frags(QF, SR1)
    def ev(t): return Z16 if t == 16 else EV + 4 * (t // 2 - 1)
    Z512, Z768, Z1024 = 124, 128, 36
    cmul(Z512, Z256, Z256); cmul(Z768, Z512, Z256); cmul(Z1024, Z512, Z512)
    kmf(D0)
    ublock(2)
    put(0, Z256)
    for e in range(1, 9):
        d = (TA_, TB_)[e & 1]
        cmul(d, Z256, ev(2 * e)); put(e, d)
    frags(QF, SR2)
    Z1280, Z1536, Z1792 = 40, 32, 44
    cmul(Z1280, Z1024, Z256); cmul(Z1536, Z1024, Z512); cmul(Z1792, Z1024, Z768)
    kmf(D1)
    ublock(3)
    big = [Z1024, Z1280, Z1536, Z1792]
    for rho in range(16):
        gg, r = rho >> 2, rho & 3
        if gg < 2: b_, t = big[2 * gg + (r >> 1)], 8 + 8 * (1 - (r & 1))
        else: b_, t = (Z512, Z768)[gg - 2], 4 + 4 * (3 - r)
        d = (TA_, TB_)[rho & 1]
        cmul(d, b_, ev(t)); put(rho, d)
    frags(QF, SRD_)
    A("v_cmp_eq_u32 vcc, 48, v1"); A("v_cndmask_b32 v17, 0, v17, vcc"); A("v_add_f32 v%d, v%d, v17" % (D0 + 3, D0 + 3))
    KW = 30
    A("v_lshlrev_b32 v24, 5, v3"); A("v_lshlrev_b32 v25, 3, v4"); A("v_sub_u32 v24, v25, v24"); A("v_add_u32 v%d, s44, v24" % KW)
    A("v_add_u32 v%d, 512, v%d" % (KW, KW))
    for d, x in ((D0, 528), (D1, 272)):
        o = 2 * x - 512
        A("v_cvt_pk_bf16_f32 v24, v%d, v%d" % (d, d + 1)); A("v_cvt_pk_bf16_f32 v25, v%d, v%d" % (d + 2, d + 3)); A("v_cvt_pk_bf16_f32 v31, v%d, v%d" % (d + 1, d + 2))
        A("ds_write_b64 v%d, v[24:25] offset:%d" % (KW, K_C0 + o))
        A("ds_write_b16 v%d, v24 offset:%d" % (KW, K_C1 + o - 2))
        A("ds_write_b32 v%d, v31 offset:%d" % (KW, K_C1 + o))
        A("ds_write_b16_d16_hi v%d, v25 offset:%d" % (KW, K_C1 + o + 4))
    A("v_cvt_pk_bf16_f32 v24, v%d, v%d" % (D1, D1)); A("v_mov_b32 v25, s44")
    A("s_mov_b64 exec, 0x8000")
    A("ds_write_b16 v25, v24 offset:%d" % (K_C0 + 58)); A("ds_write_b32 v25, v24 offset:%d" % (K_C0 + 60))
    A("ds_write_b32 v25, v24 offset:%d" % (K_C1 + 56)); A("ds_write_b16 v25, v24 offset:%d" % (K_C1 + 60))
    A("s_mov_b64 exec, -1")
    A("s_waitcnt lgkmcnt(12)")
    for k in range(8):
        A("v_mfma_f32_16x16x32_bf16 %s, %s, %s, %s" % (v(D2, 4), v(QF + 4 * k, 4), v(PF + 4 * k, 4), v(D2, 4) if k else "0"))
    A("v_lshlrev_b32 v10, 2, v3"); A("v_lshlrev_b32 v25, 7, v4"); A("v_add_u32 v10, v10, v25"); A("v_sub_u32 v10, %d, v10" % (K_R3 + 252))
    A("v_add_u32 v11, -64, v10")
    A("v_lshlrev_b32 v26, 3, v3"); A("v_add_u32 v26, v26, v25"); A("v_sub_u32 v26, %d, v26" % (K_R2 + 376 + 256))
    A("v_add_u32 v27, 4, v26")
    A("v_cmp_gt_u32 vcc, 2, v4")
    A("v_cndmask_b32 v10, v26, v10, vcc"); A("v_cndmask_b32 v11, v27, v11, vcc")
    A("v_add_u32 v10, s44, v10"); A("v_add_u32 v11, s44, v11")
    A("v_and_b32 v24, 1, v3"); A("v_cmp_eq_u32 vcc, 1, v24")
    A("v_mov_b32 v24, %d" % (K_C1 - 2)); A("v_mov_b32 v25, %d" % K_C0); A("v_cndmask_b32 v24, v24, v25, vcc")
    A("v_lshlrev_b32 v25, 4, v4"); A("v_add_u32 v24, v24, v25"); A("v_lshlrev_b32 v25, 1, v3"); A("v_sub_u32 v24, v24, v25")
    A("v_add_u32 v24, s44, v24"); A("v_add_u32 v24, %d, v24" % (2 * (527 - 512)))
    A("v_add_u32 v25, 512, v24")
    A("s_waitcnt lgkmcnt(0)")
    for s_ in range(17):
        ad, o = (24, 16 * (16 - s_)) if s_ > 8 else (25, 16 * (8 - s_))
        A("ds_read2_b32 %s, v%d offset0:%d offset1:%d" % (v(KF + 4 * s_, 2), ad, o, o + 1))
        A("ds_read2_b32 %s, v%d offset0:%d offset1:%d" % (v(KF + 4 * s_ + 2, 2), ad, o + 2, o + 3))
        if s_ == 2:
            A("v_cvt_pk_bf16_f32 v12, v%d, v%d" % (D2, D2 + 1)); A("v_cvt_pk_bf16_f32 v13, v%d, v%d" % (D2 + 2, D2 + 3))
            A("ds_write_b32 v10, v12"); A("ds_write_b32 v11, v13")
    A("v_lshlrev_b32 v26, 5, v4"); A("v_lshlrev_b32 v27, 3, v3"); A("v_sub_u32 v26, v26, v27")
    A("v_add_u32 v26, s44, v26"); A("v_add_u32 v26, %d, v26" % (K_R2 + 120))
    A("v_lshlrev_b32 v27, 4, v4"); A("v_lshlrev_b32 v28, 2, v3"); A("v_sub_u32 v27, v27, v28"); A("v_add_u32 v27, s44, v27"); A("v_add_u32 v27, %d, v27" % (K_R3 + 60))
    A("v_mov_b32 v28, s44")
    for dl in (2, 3, 4):
        for op in range(2):
            o = 128 * (4 - dl) + 16 * op
            A("ds_read_b64 %s, v26 offset:%d" % (v(F2 + 8 * (dl - 2) + 4 * op, 2), o)); A("ds_read_b64 %s, v26 offset:%d" % (v(F2 + 8 * (dl - 2) + 4 * op + 2, 2), o + 8))
    for dl in (4, 5, 6, 7):
        o = 16 * (7 - dl)
        A("ds_read2_b32 %s, v27 offset0:%d offset1:%d" % (v(F3 + 4 * (dl - 4), 2), o, o + 1))
        A("ds_read2_b32 %s, v27 offset0:%d offset1:%d" % (v(F3 + 4 * (dl - 4) + 2, 2), o + 2, o + 3))
    A("ds_read_u16 v29, v28 offset:%d" % (K_R2 + 128))
    UA = 5
    A("v_lshlrev_b32 v%d, 5, v3" % UA); A("v_lshl_add_u32 v%d, v4, 4, v%d" % (UA, UA)); A("v_add_u32 v%d, s45, v%d" % (UA, UA))
    A("v_lshlrev_b32 v9, 4, v1"); A("v_add_u32 v9, %d, v9" % BND0)
    A("s_cmp_ge_u32 s3, 4"); A("s_cbranch_scc1 L_a_nb")
    g.stamp(2)
    A("s_barrier")
    g.stamp(3)
    A("L_a_nb:")
    for bi in range(6): A("ds_read_b128 %s, v9 offset:%d" % (v(BAND + 4 * bi, 4), 1024 * bi))
    A("ds_read_b128 %s, v9 offset:%d" % (v(FIX, 4), 1024 * 6))
    g.stamp(4)
    NU_, DEP = 6, 4
    def ureg(w): return UB + 4 * ((w + 7) % NU_)
    pend = []
    def rd(tag, txt):
        A(txt); pend.append(tag)
    def need(tag):
        if tag in pend:
            i = pend.index(tag)
            A("s_waitcnt lgkmcnt(%d)" % (len(pend) - 1 - i))
            del pend[:i + 1]
    def rdu(w):
        rd(("u", w), "ds_read_b128 %s, v%d offset:%d" % (v(ureg(w), 4), UA, 32 + 64 * (w + 7)))
        if w % 8 == 0 and 0 <= w <= 40:
            rd(("o", w), "ds_read_b128 %s, v%d offset:%d" % (v(UO, 4), UA, 16 + 64 * (w + 7)))
    started = set()
    def mf(acc, a_, b_, zero=False):
        if ACC <= acc < ACC + 32 and acc not in started:
            zero = True; started.add(acc)
        A("v_mfma_f32_16x16x32_bf16 %s, %s, %s, %s" % (v(acc, 4), v(a_, 4), v(b_, 4), "0" if zero else v(acc, 4)))
    for w in range(-7, -7 + DEP): rdu(w)
    later = {}
    for w in range(-7, 57):
        need(("u", w))
        if w == -7:
            A("v_lshl_or_b32 v29, v29, 16, v29")
            for q in range(4): A("v_and_b32 v%d, v29, v%d" % (FIX + q, FIX + q))
        T = -((-w) // 8)
        u = ureg(w)
        L = []
        for T_, s_ in ((T, 8 * T - w), (T + 1, 8 * T + 8 - w), (T + 2, 8 * T + 16 - w)):
            if T_ <= 7 and s_ <= 16: L.append((ACC + 4 * T_, KF + 4 * s_, u))
        if w in (0, 8, 16, 24): L.append((ACC + 4 * (w // 8 + 4), FIX, u))
        mf(*L[0])
        if w + DEP <= 56: rdu(w + DEP)
        for m in L[1:]: mf(*m)
        if w % 8 == 0 and 0 <= w <= 40:
            sg = w // 8
            need(("o", w))
            for bi in range(6 if sg <= 3 else 4):
                mf(BOX + 4 * bi, UO if BANDS[bi][2] == 24 else u, BAND + 4 * bi, zero=True)
            cv = []
            for op in range(2):
                for rr in range(2):
                    r = 2 * op + rr
                    cv.append("v_cvt_pk_bf16_f32 v%d, v%d, v%d" % (X2 + 4 * op + 2 * rr, BOX + 12 + r, BOX + 8 + r))
                    cv.append("v_cvt_pk_bf16_f32 v%d, v%d, v%d" % (X2 + 4 * op + 2 * rr + 1, BOX + 4 + r, BOX + r))
            if sg <= 3:
                for r in range(4): cv.append("v_cvt_pk_bf16_f32 v%d, v%d, v%d" % (X3 + r, BOX + 20 + r, BOX + 16 + r))
            for i, c_ in enumerate(cv): later.setdefault(w + 2 + i // 4, []).append(c_)
            far = []
            for dl in (2, 3, 4):
                if sg + dl <= 7:
                    for op in range(2): far.append((ACC + 4 * (sg + dl), X2 + 4 * op, F2 + 8 * (dl - 2) + 4 * op))
            if sg <= 3:
                for dl in (4, 5, 6, 7):
                    if sg + dl <= 7: far.append((ACC + 4 * (sg + dl), X3, F3 + 4 * (dl - 4)))
            for i, m in enumerate(far): later.setdefault(w + 5 + i % 3, []).append(m)
        for it in later.pop(w, []):
            if isinstance(it, str): A(it)
            else: mf(*it)
    assert not later
    g.stamp(5)
    EA_ = 6
    A("v_lshlrev_b32 v%d, 5, v3" % EA_); A("v_lshl_add_u32 v%d, v4, 3, v%d" % (EA_, EA_)); A("v_add_u32 v%d, s45, v%d" % (EA_, EA_))
    for T in range(8):
        ac = ACC + 4 * T
        A("v_cvt_pk_bf16_f32 v%d, v%d, v%d" % (ac, ac, ac + 1)); A("v_cvt_pk_bf16_f32 v%d, v%d, v%d" % (ac + 1, ac + 2, ac + 3))
        A("ds_write_b64 v%d, %s offset:%d" % (EA_, v(ac, 2), 512 + 512 * T))
    A("v_lshrrev_b32 v8, 1, v0"); A("v_and_b32 v9, 1, v0")
    A("s_movk_i32 s30, %d" % (4 * USTR)); A("v_mul_lo_u32 v10, v9, s30"); A("v_lshl_add_u32 v10, v8, 4, v10")
    A("s_mov_b32 s30, %d" % (8 * 4608)); A("v_mul_lo_u32 v11, v8, s30"); A("v_lshl_add_u32 v11, v9, 4, v11"); A("s_lshl_b32 s30, s5, 5"); A("v_add_u32 v11, s30, v11")
    for e in range(8): A("s_mov_b32 s%d, %d" % (50 + e, e * 4608))
    A("s_waitcnt lgkmcnt(0)")
    A("s_barrier")
    g.stamp(6)
    for cc in range(4): A("ds_read_b128 %s, v10 offset:%d" % (v(64 + 4 * cc, 4), cc * USTR + 512))
    A("s_waitcnt lgkmcnt(0)")
    for e in range(8):
        for cc in range(4):
            src = 64 + 4 * cc + (e >> 1)
            if e & 1: A("v_and_b32 v%d, 0xffff0000, v%d" % (96 + 4 * e + cc, src))
            else: A("v_lshlrev_b32 v%d, 16, v%d" % (96 + 4 * e + cc, src))
        A("buffer_store_dwordx4 %s, v11, s[36:39], s%d offen" % (v(96 + 4 * e, 4), 50 + e))
    if g.stamps:
        A("s_waitcnt vmcnt(0)")
        g.stamp(7)
        A("s_and_b32 s5, s3, 3"); A("s_cmp_lg_u32 s5, 0"); A("s_cbranch_scc1 L_end")
        A("s_lshl_b32 s5, s3, 6"); A("s_add_u32 s2, s2, s5")
        g.write_stamps(2, 40)
    A("s_endpgm")

def build(path, stamps=False, **opt):
    g = G(stamps, **opt)
    A = g.A
    kernel_begin(A, KNAME)
    g.stamp(0)
    if stamps:
        for i in range(1, 8): A("s_mov_b64 s[%d:%d], 0" % (84 + 2 * i, 85 + 2 * i))
    A("s_cmp_ge_u32 s2, %d" % (NB + NA)); A("s_cbranch_scc1 L_end")
    A("v_lshrrev_b32 v2, 6, v0"); A("v_and_b32 v1, 63, v0")
    A("v_readfirstlane_b32 s3, v2")
    A("s_cmp_ge_u32 s2, %d" % NB); A("s_cbranch_scc1 L_arole")
    b_role(g)
    A("L_arole:")
    a_role(g)
    A("L_end:")
    A("s_endpgm")
    lines, n = hazard.fix(A.lines)
    t = HEADER + "; @launch grid=(%d,1,1) block=(512,1,1) lds=163840\n" % (NB + NA)
    t += '.amdgcn_target "amdgcn-amd-amdhsa--gfx950"\n.text\n' + "\n".join(lines) + "\n"
    t += '.section .rodata,"a"\n' + kd(KNAME, 256, 102, 256)
    open(path, "w").write(t)

if __name__ == "__main__":
    build("concat_heads__ssm_conv_s4__ssm_conv_s5__prompt.s")
    build("t_f.s", stamps=True)
```

```python
import struct
from asmlib import *

LOG2E = 0x3fb8aa3b
INV2PI = 0x3e22f983
WS_F = 0x400
WS_X = 0x1800
WS_E = 0x2000
WS_H = 0x100000
CH_BYTES = 36 * 8192
NB = 144
SYNC = 147456 + 7 * 2048
NRING = 7
NA = 72
KNAME = "concat_heads__ssm_conv_s4__ssm_conv_s5__prompt_kernel"

class G:
    def __init__(self, stamps=False, **opt):
        self.A = Asm(); self.stamps = stamps; self.opt = opt
    def stamp(self, i, grp=None):
        if not self.stamps: return
        if (grp or "std") != self.opt.get("stgrp", "std") and i != 0: return
        self.A("s_memrealtime s[%d:%d]" % (84 + 2 * i, 85 + 2 * i))
    def clk(self, i, grp="clk"):
        if self.stamps and self.opt.get("stgrp") == grp:
            self.A("s_memrealtime s[%d:%d]" % (84 + 2 * i, 85 + 2 * i)); self.A("s_memtime s[%d:%d]" % (86 + 2 * i, 87 + 2 * i))
    def write_stamps(self, rec_sreg, ws_srd):
        if not self.stamps: return
        A = self.A
        A("s_waitcnt lgkmcnt(0)")
        A("s_mov_b64 exec, 1")
        A("s_lshl_b32 s82, s%d, 6" % rec_sreg); A("s_add_u32 s82, s82, %d" % STAMP_OFF); A("v_mov_b32 v1, s82")
        for i in range(8):
            A("v_mov_b32 v2, s%d" % (84 + 2 * i)); A("v_mov_b32 v3, s%d" % (85 + 2 * i))
            A("buffer_store_dwordx2 v[2:3], v1, s[%d:%d], 0 offen offset:%d" % (ws_srd, ws_srd + 3, 8 * i))
            A("s_nop 1")

def f32hex(x):
    return "0x%08x" % struct.unpack("<I", struct.pack("<f", x))[0]

def cexp(A, dre, dim, er, ei, m, t0, t1):
    if m is None:
        A("v_exp_f32 v%d, v%d" % (t0, er)); A("v_fract_f32 v%d, v%d" % (t1, ei))
    else:
        A("v_mul_f32 v%d, %s, v%d" % (t0, m, er)); A("v_mul_f32 v%d, %s, v%d" % (t1, m, ei))
        A("v_exp_f32 v%d, v%d" % (t0, t0)); A("v_fract_f32 v%d, v%d" % (t1, t1))
    A("v_cos_f32 v%d, v%d" % (dre, t1)); A("v_sin_f32 v%d, v%d" % (dim, t1))
    A("v_mul_f32 v%d, v%d, v%d" % (dre, t0, dre)); A("v_mul_f32 v%d, v%d, v%d" % (dim, t0, dim))

def cfma(A, d, a, b, c):
    A("v_fma_f32 v%d, v%d, v%d, v%d" % (d[0], a[0], b[0], c[0])); A("v_fma_f32 v%d, v%d, v%d, v%d" % (d[1], a[0], b[1], c[1]))
    A("v_fma_f32 v%d, -v%d, v%d, v%d" % (d[0], a[1], b[1], d[0])); A("v_fma_f32 v%d, v%d, v%d, v%d" % (d[1], a[1], b[0], d[1]))
def P(r): return (r, r + 1)

LO = "op_sel:[0,0,0] op_sel_hi:[0,1,1]"; HI = "op_sel:[1,0,0] op_sel_hi:[1,1,1]"; NEG = " neg_lo:[1,0,0] neg_hi:[1,0,0]"
LO2 = "op_sel:[0,0] op_sel_hi:[0,1]"; HI2 = "op_sel:[1,0] op_sel_hi:[1,1]"; NEG2 = " neg_lo:[1,0] neg_hi:[1,0]"


WS_U = 0x800000
NT = 40
UGS = 32768 + 384
WS_E2 = 0x80
WS_TF = 0x40000
NTR = 32
```

```python
import re
TRANS = ("v_exp_f32", "v_log_f32", "v_rcp_f32", "v_rsq_f32", "v_sqrt_f32", "v_sin_f32", "v_cos_f32")
REG = re.compile(r"^(-|abs\()?\s*([vas])(\d+)\)?$")
RNG = re.compile(r"^(-)?([vas])\[(\d+):(\d+)\]$")

def regs_of(op):
    op = op.strip()
    m = REG.match(op)
    if m: return {(m.group(2), int(m.group(3)))}
    m = RNG.match(op)
    if m: return {(m.group(2), i) for i in range(int(m.group(3)), int(m.group(4)) + 1)}
    if op == "vcc": return {("s", "vcc")}
    if op == "m0": return {("s", "m0")}
    if op == "exec": return {("s", "exec")}
    return set()

def split_ops(s):
    out, depth, cur = [], 0, ""
    for ch in s:
        if ch in "[(": depth += 1
        if ch in "])": depth -= 1
        if ch == "," and depth == 0:
            out.append(cur); cur = ""
        else: cur += ch
    if cur.strip(): out.append(cur)
    return [o.strip() for o in out]

class I:
    pass

def parse(line):
    t = line.split(";")[0].strip()
    i = I(); i.text = line; i.kind = None; i.w = set(); i.r = set(); i.states = 1
    if not t or t.startswith("."):
        i.kind = "nil"; i.states = 0; return i
    if t.endswith(":"):
        i.kind = "label"; i.states = 0; return i
    parts = t.split(None, 1)
    mn = parts[0]; rest = parts[1] if len(parts) > 1 else ""
    i.mn = mn
    ops = split_ops(rest)
    mods = ""
    if ops:
        lastp = ops[-1].split()
        ops[-1] = lastp[0]; mods = " ".join(lastp[1:])
    i.mods = mods
    R = [regs_of(o) for o in ops]
    allr = set().union(*R) if R else set()
    if mn == "s_nop":
        i.kind = "salu"; i.states = int(ops[0], 0) + 1; return i
    if mn.startswith("s_cbranch") or mn == "s_branch" or mn == "s_endpgm" or mn.startswith("s_setpc") or mn.startswith("s_swappc"):
        i.kind = "branch"; return i
    if mn.startswith("s_"):
        i.kind = "salu"
        if mn.startswith("s_cmp") or mn in ("s_waitcnt", "s_barrier", "s_sleep", "s_setprio", "s_bitcmp1_b32", "s_bitcmp0_b32"):
            i.r = allr
        else:
            i.w = R[0] if R else set(); i.r = set().union(*R[1:]) if len(R) > 1 else set()
        return i
    if mn.startswith("v_mfma"):
        i.kind = "mfma"; i.w = R[0]; i.a = R[1] | R[2]; i.c = R[3]; i.r = i.a | i.c
        i.passes = 4 if "16x16x32" in mn else 8
        assert "16x16x32" in mn or "32x32x16" in mn, mn
        return i
    if mn.startswith("v_"):
        i.kind = "valu"
        i.trans = mn.replace("_e32", "").replace("_e64", "") in TRANS
        i.dpp = "dpp" in mn or "row_" in mods or "quad_perm" in mods
        i.perm = mn.startswith("v_permlane")
        i.rl = mn.startswith("v_readfirstlane") or mn.startswith("v_readlane")
        i.w = set(R[0]); i.r = set().union(*R[1:]) if len(R) > 1 else set()
        if mn.startswith("v_fmac") or mn.startswith("v_pk_fmac") or mn.startswith("v_writelane"): i.r |= R[0]
        if i.perm: i.w |= R[1]; i.r |= R[0]
        assert not mn.startswith("v_cmpx"), "no cmpx"
        assert "_co_" not in mn, "no carry ops"
        return i
    if mn.startswith("ds_"):
        i.kind = "ds"
        if "addtid" in mn:
            i.r = allr | {("s", "m0")}; return i
        if mn.startswith("ds_read") or mn.startswith("ds_bpermute") or mn.startswith("ds_swizzle"):
            i.w = R[0]; i.r = set().union(*R[1:])
        else:
            i.r = allr
        return i
    if mn.startswith("buffer_") or mn.startswith("global_"):
        i.kind = "vmem"
        i.lds = " lds" in (" " + mods)
        i.wide_store = False
        if mn in ("buffer_inv", "buffer_wbl2"): return i
        if "store" in mn:
            i.r = allr
            if "x3" in mn or "x4" in mn:
                i.wide_store = True
                i.data = R[0] if mn.startswith("buffer_") else R[1]
        elif "atomic" in mn:
            i.r = allr
            if "sc0" in mods: i.w = R[0]
        elif i.lds:
            i.r = allr | {("s", "m0")}
        else:
            i.w = R[0]; i.r = set().union(*R[1:])
        return i
    raise ValueError("unknown instruction: " + line)

def vec(rs): return {r for r in rs if r[0] in "va"}
def sca(rs): return {r for r in rs if r[0] == "s"}

def need(p, c):
    n = 0
    if p.kind == "valu":
        wv, ws = vec(p.w), sca(p.w)
        if c.kind == "mfma" and wv & c.r: n = max(n, 2)
        if c.kind == "valu":
            if p.trans and not c.trans and wv & c.r: n = max(n, 1)
            if p.trans and c.trans and wv & c.r: n = max(n, 1)
            if c.rl and wv & c.r: n = max(n, 1)
            if (c.perm or c.dpp) and wv & c.r: n = max(n, 2)
            if ws & c.r: n = max(n, 4 if c.rl or c.mn.startswith("v_writelane") else 2)
        if c.kind == "vmem" and ws & c.r: n = max(n, 5)
        if c.kind == "salu" and ws & c.r: n = max(n, 1)
        if c.kind == "branch" and ws: n = max(n, 5)
    elif p.kind == "mfma":
        big = {4: 8, 8: 12}[p.passes]; mid = {4: 6, 8: 10}[p.passes]; war = {4: 3, 8: 7}[p.passes]
        if c.kind == "mfma":
            if p.w & c.a: n = max(n, big)
            if p.w & c.c and not (p.w == c.c and p.passes == c.passes): n = max(n, mid)
            if p.w & c.w and not (p.w == c.c): n = max(n, mid)
        elif c.kind in ("valu", "ds", "vmem"):
            if p.w & (c.r | c.w): n = max(n, big)
            if c.kind == "valu" and p.c & c.w: n = max(n, war)
    elif p.kind == "salu":
        if ("s", "m0") in p.w and c.kind == "vmem" and c.lds: n = max(n, 1)
        if ("s", "m0") in p.w and c.kind == "ds" and "addtid" in c.mn: n = max(n, 1)
    elif p.kind == "vmem":
        if p.wide_store and c.kind in ("valu", "mfma", "ds", "vmem") and p.data & c.w: n = max(n, 2)
    return n

def maxneed(p):
    if p.kind == "valu": return 5 if sca(p.w) else 2
    if p.kind == "mfma": return {4: 8, 8: 12}[p.passes]
    if p.kind == "salu": return 1 if ("s", "m0") in p.w else 0
    if p.kind == "vmem": return 2 if p.wide_store else 0
    return 0

def fix(lines):
    out = []; hist = []
    nins = 0
    def pad(k):
        nonlocal nins
        while k > 0:
            m = min(k, 16)
            out.append("    s_nop %d" % (m - 1)); nins += 1
            for h in hist: h[1] += m
            k -= m
    for line in lines:
        c = parse(line)
        if c.kind == "nil":
            out.append(line); continue
        if "noflush" in line:
            if c.kind == "label":
                out.append(line); continue
            c.kind = "salu"; c.w = set(); c.r = set()
        if c.kind in ("label", "branch"):
            extra = c.states
            k = max([maxneed(p) - d - extra for p, d in hist] + [need(p, c) - d for p, d in hist] + [0])
            pad(k)
            out.append(line)
            hist = []
            continue
        k = max([need(p, c) - d for p, d in hist] + [0])
        pad(k)
        out.append(line)
        for h in hist: h[1] += c.states
        hist.append([c, 0])
        hist = [h for h in hist if h[1] < 13]
    return out, nins
```

```python
from asmlib import *
from common import *

UTB = 36864
SEQ0 = UTB
SEQSTR = 9216; SROW = 528
KA0 = SEQ0 + 8 * SEQSTR
KASTR = 4096
K_C0, K_C1, K_R2, K_R3 = 0, 1216, 2560, 3072
BND0 = KA0 + 8 * KASTR
BANDS = [(3, 5, 16), (6, 10, 16), (11, 13, 16), (14, 18, 24), (5, 11, 16), (12, 20, 24), (3, 4, 16), (3, 4, 16)]

def a_role(g):
    A = g.A
    A("s_sub_u32 s4, s2, %d" % NB)
    A("s_load_dwordx16 s[8:23], s[0:1], 0")
    A("s_load_dwordx2 s[24:25], s[0:1], %d" % KOFF["A_Dskip"])
    A("s_load_dwordx4 s[60:63], s[0:1], %d" % KOFF["B_C_re"])
    A("s_load_dwordx4 s[28:31], s[0:1], %d" % KOFF["out"])
    A("s_load_dwordx2 s[26:27], s[0:1], %d" % KOFF["ws"])
    A("s_and_b32 s5, s4, 7"); A("s_lshr_b32 s6, s4, 3"); A("s_mul_i32 s5, s5, 9"); A("s_add_u32 s5, s5, s6")
    A("s_lshl_b32 s7, s5, 3"); A("s_add_u32 s7, s7, s3")
    A("v_and_b32 v3, 15, v1"); A("v_lshrrev_b32 v4, 4, v1")
    A("s_lshl_b32 s33, s7, 8"); A("v_lshl_add_u32 v5, v1, 2, s33")
    A("s_lshl_b32 s33, s7, 1"); A("v_mov_b32 v6, s33")
    A("s_waitcnt lgkmcnt(0)")
    PR = 10
    for i in range(6): A("global_load_dword v%d, v5, s[%d:%d]" % (PR + i, 10 + 2 * i, 11 + 2 * i))
    A("global_load_ushort v16, v6, s[22:23]"); A("global_load_ushort v17, v6, s[24:25]")
    srd(A, 36, 28, 2048 * 4608); srd(A, 40, 26, 0x10000000)
    srd(A, 32, 8, 2048 * 1152)
    A("s_movk_i32 s49, 1152"); A("s_lshl_b32 s66, s5, 4"); A("v_mov_b32 v7, s66"); A("v_mad_u32_u24 v7, v1, s49, v7")
    A("s_lshl_b32 s49, s3, 3"); A("s_lshl_b32 s66, s6, 2"); A("s_add_u32 s49, s49, s66")
    UPOS = g.opt.get("upos", [0, 0, 1, 1, 2, 2, 3, 3])
    npf = [0]
    side = []
    class Side:
        def __init__(self, tag): self.tag = tag
        def __enter__(self):
            A("s_cmp_ge_u32 s3, 4"); A("s_cbranch_scc1 L_a_s%s" % self.tag); A("L_a_r%s:" % self.tag)
            self.keep = A.lines; A.lines = []
            A("L_a_s%s:" % self.tag)
        def __exit__(self, *a):
            A("s_branch L_a_r%s" % self.tag)
            side.extend(A.lines); A.lines = self.keep
    def pf(k):
        idx = [i for i in range(8) if UPOS[i] == k]
        if not idx: return
        with Side("p%d" % k):
            for i in idx:
                A("s_add_u32 s66, s49, %d" % i); A("s_and_b32 s%d, s66, 31" % (68 + i)); A("s_mul_i32 s66, s%d, %d" % (68 + i, 64 * 1152))
                A("s_lshl_b32 s%d, s%d, 10" % (68 + i, 68 + i)); A("s_add_u32 m0, s%d, 4096" % (68 + i))
                A("buffer_load_dwordx4 v7, s[32:35], s66 offen lds")
            A("s_mov_b32 m0, s46")
    def utrans(k):
        if g.opt.get("utpos", 5) != k: return
        with Side("u"):
            A("v_lshrrev_b32 v24, 4, v1"); A("v_bfe_u32 v25, v1, 1, 1"); A("v_lshl_add_u32 v25, v24, 1, v25"); A("v_lshlrev_b32 v25, 7, v25")
            A("v_bfe_u32 v30, v1, 2, 2"); A("v_lshl_add_u32 v25, v30, 4, v25"); A("v_and_b32 v30, 1, v1"); A("v_lshl_add_u32 v25, v30, 3, v25")
            A("v_and_b32 v30, 7, v1"); A("v_xor_b32 v30, v30, v24"); A("v_lshlrev_b32 v30, 4, v30"); A("v_lshrrev_b32 v31, 3, v1"); A("v_lshl_add_u32 v30, v31, 7, v30")
            A("s_waitcnt vmcnt(0) lgkmcnt(0)")
            g.stamp(3)
            for i in range(8):
                A("v_add_u32 v24, s%d, v25" % (68 + i))
                A("ds_read_b64_tr_b16 %s, v24 offset:4096" % v(64 + 4 * i, 2)); A("ds_read_b64_tr_b16 %s, v24 offset:%d" % (v(66 + 4 * i, 2), 4096 + 64))
            for i in range(8):
                A("s_lshr_b32 s66, s%d, 4" % (68 + i)); A("s_and_b32 s66, s66, 64")
                A("v_xor_b32 v24, s66, v30"); A("v_add_u32 v24, s%d, v24" % (68 + i))
                A("s_waitcnt lgkmcnt(%d)" % (14 - 2 * i + i))
                A("ds_write_b128 v24, %s offset:4096" % v(64 + 4 * i, 4))
            A("s_waitcnt lgkmcnt(0)")
            A("s_barrier")
    A("s_cmp_ge_u32 s3, 4"); A("s_cbranch_scc1 L_a_c0")
    A("s_setprio 2")
    A("L_a_c0:")
    for i in range(4): A("v_mov_b32 v%d, 0" % (20 + i))
    A("s_mul_i32 s66, s3, %d" % KASTR); A("s_add_u32 s44, s66, %d" % KA0)
    A("v_lshl_add_u32 v9, v1, 4, s44")
    for i in range(4): A("ds_write_b128 v9, v[20:23] offset:%d" % (1024 * i))
    A("v_lshlrev_b32 v9, 3, v0"); A("ds_write_b64 v9, v[20:21]")
    A("s_mul_i32 s46, s3, %d" % SEQSTR)
    A("s_mov_b32 s50, %d" % (BANDS[0][2] - BANDS[0][1])); A("s_mov_b32 s51, %d" % ((1 << (BANDS[0][1] - BANDS[0][0] + 1)) - 1))
    for bi in range(1, 8):
        lo, hi, W = BANDS[bi]
        A("s_cmp_eq_u32 s3, %d" % bi); A("s_cselect_b32 s50, %d, s50" % (W - hi)); A("s_cselect_b32 s51, %d, s51" % ((1 << (hi - lo + 1)) - 1))
    A("s_mov_b32 s47, 0x3f800000"); A("s_mov_b32 s48, 0xffff0000"); A("s_cmp_ge_u32 s3, 6"); A("s_cselect_b32 s47, s48, s47"); A("s_lshr_b32 s48, s47, 16")
    A("v_lshlrev_b32 v18, 3, v4")
    A("v_add_u32 v19, s50, v3"); A("v_lshlrev_b32 v19, v19, s51"); A("v_lshrrev_b32 v19, v18, v19")
    for q in range(4):
        A("v_bfe_i32 v24, v19, %d, 1" % (2 * q)); A("v_bfe_i32 v25, v19, %d, 1" % (2 * q + 1))
        A("v_and_b32 v24, s48, v24"); A("v_and_or_b32 v%d, v25, s47, v24" % (20 + q))
    A("s_lshl_b32 s66, s3, 10"); A("s_add_u32 s66, s66, %d" % BND0); A("v_lshl_add_u32 v9, v1, 4, s66"); A("ds_write_b128 v9, v[20:23]")
    KF, FIX, F3, F2, BAND, ACC, UB, UO, BOX, X3, X2 = 64, 132, 136, 152, 176, 32, 200, 224, 228, 20, 24
    PF, EV, Z512, Z768, QF = 144, 176, 204, 208, 212
    D0, D1, D2 = 132, 136, 140
    WT = 244
    SRD_, SR1, SR2, KW, KR, R23A, R23B, F2A, F3A = 18, 19, 5, 6, 8, 9, 26, 27, 28
    A("s_movk_i32 s66, %d" % SROW); A("s_add_u32 s50, s46, %d" % SEQ0)
    A("v_lshl_add_u32 v24, v4, 4, s50")
    A("v_mad_u32_u24 v%d, v3, s66, v24" % SRD_)
    A("v_sub_u32 v25, 15, v3"); A("v_mad_u32_u24 v%d, v25, s66, v24" % SR1)
    A("v_and_b32 v30, 3, v25"); A("v_max_u32 v30, 1, v30"); A("v_lshrrev_b32 v25, 2, v25"); A("v_lshl_add_u32 v25, v25, 1, v30"); A("v_add_u32 v25, -1, v25")
    A("v_mad_u32_u24 v%d, v25, s66, v24" % SR2)
    A("v_lshlrev_b32 v24, 5, v3"); A("v_lshlrev_b32 v25, 3, v4"); A("v_sub_u32 v24, v25, v24"); A("v_add_u32 v%d, s44, v24" % KW)
    A("v_add_u32 v%d, 512, v%d" % (KW, KW))
    A("v_lshlrev_b32 v%d, 2, v3" % R23A); A("v_lshlrev_b32 v25, 7, v4"); A("v_add_u32 v%d, v%d, v25" % (R23A, R23A)); A("v_sub_u32 v%d, %d, v%d" % (R23A, K_R3 + 252, R23A))
    A("v_add_u32 v%d, -64, v%d" % (R23B, R23A))
    A("v_lshlrev_b32 v30, 3, v3"); A("v_add_u32 v30, v30, v25"); A("v_sub_u32 v30, %d, v30" % (K_R2 + 376 + 256))
    A("v_add_u32 v31, 4, v30")
    A("v_cmp_gt_u32 vcc, 2, v4")
    A("v_cndmask_b32 v%d, v30, v%d, vcc" % (R23A, R23A)); A("v_cndmask_b32 v%d, v31, v%d, vcc" % (R23B, R23B))
    A("v_add_u32 v%d, s44, v%d" % (R23A, R23A)); A("v_add_u32 v%d, s44, v%d" % (R23B, R23B))
    A("v_and_b32 v24, 1, v3"); A("v_cmp_eq_u32 vcc, 1, v24")
    A("v_mov_b32 v24, %d" % (K_C1 - 2)); A("v_mov_b32 v25, %d" % K_C0); A("v_cndmask_b32 v24, v24, v25, vcc")
    A("v_lshlrev_b32 v25, 4, v4"); A("v_add_u32 v24, v24, v25"); A("v_lshlrev_b32 v25, 1, v3"); A("v_sub_u32 v24, v24, v25")
    A("v_add_u32 v24, s44, v24"); A("v_add_u32 v%d, %d, v24" % (KR, 2 * (527 - 512)))
    A("v_lshlrev_b32 v%d, 5, v4" % F2A); A("v_lshlrev_b32 v25, 3, v3"); A("v_sub_u32 v%d, v%d, v25" % (F2A, F2A))
    A("v_add_u32 v%d, s44, v%d" % (F2A, F2A)); A("v_add_u32 v%d, %d, v%d" % (F2A, K_R2 + 120, F2A))
    A("v_lshlrev_b32 v%d, 4, v4" % F3A); A("v_lshlrev_b32 v25, 2, v3"); A("v_sub_u32 v%d, v%d, v25" % (F3A, F3A))
    A("v_add_u32 v%d, s44, v%d" % (F3A, F3A)); A("v_add_u32 v%d, %d, v%d" % (F3A, K_R3 + 60, F3A))
    A("s_mov_b32 m0, s46")
    g.stamp(1)
    A("s_waitcnt vmcnt(0)")
    g.clk(1); g.stamp(1, "kg")
    pf(0)
    AR, AI, BR, BI, CR, CI = 32, 34, 36, 38, 40, 42
    for i, d in enumerate((AR, AI, BR, BI, CR, CI)):
        A("v_lshlrev_b32 v%d, 16, v%d" % (d, PR + i)); A("v_and_b32 v%d, 0xffff0000, v%d" % (d + 1, PR + i))
    A("v_lshlrev_b32 v16, 16, v16"); A("v_lshlrev_b32 v17, 16, v17")
    A("v_mul_f32 v16, 0x%x, v16" % LOG2E); A("v_exp_f32 v16, v16")
    A("v_cvt_pk_bf16_f32 v16, v16, v16"); A("v_and_b32 v16, 0xffff0000, v16")
    for d in (AR, AR + 1, AI, AI + 1, BR, BR + 1, BI, BI + 1): A("v_mul_f32 v%d, v16, v%d" % (d, d))
    for d in (AR, AR + 1): A("v_mul_f32 v%d, 0x%x, v%d" % (d, LOG2E, d))
    for d in (AI, AI + 1): A("v_mul_f32 v%d, 0x%x, v%d" % (d, INV2PI, d))
    def cmul(d, a_, b_):
        A("v_pk_mul_f32 %s, %s, %s" % (v(d, 2), v(a_, 2), v(b_, 2)))
        A("v_pk_mul_f32 %s, %s, %s" % (v(d + 2, 2), v(a_, 2), v(b_ + 2, 2)))
        A("v_pk_fma_f32 %s, %s, %s, %s%s" % (v(d, 2), v(a_ + 2, 2), v(b_ + 2, 2), v(d, 2), NEG))
        A("v_pk_fma_f32 %s, %s, %s, %s" % (v(d + 2, 2), v(a_ + 2, 2), v(b_, 2), v(d + 2, 2)))
    def anchor(d, m):
        for k in range(2): cexp(A, d + k, d + 2 + k, AR + k, AI + k, None if m == 1 else f32hex(m), 24, 25)
    Z1, Z16, Z256, TA_, TB_ = 44, 48, 52, 56, 60
    def pack(row, q, neg=False):
        w = WT + 2 * (row & 3); sg = "-" if neg else ""
        A("v_cvt_pk_bf16_f32 v%d, v%d, v%d" % (w, q, q + 1))
        A("v_cvt_pk_bf16_f32 v%d, %sv%d, %sv%d" % (w + 1, sg, q + 2, sg, q + 3))
    def wr(row):
        w = WT + 2 * (row & 3)
        A("ds_write_addtid_b32 v%d offset:%d" % (w, SEQ0 + row * SROW))
        A("ds_write_addtid_b32 v%d offset:%d" % (w + 1, SEQ0 + row * SROW + 256))
    def frags(dst, addr):
        A("s_waitcnt lgkmcnt(0)")
        for k in range(8): A("ds_read_b128 %s, v%d offset:%d" % (v(dst + 4 * k, 4), addr, 64 * k))
    def kmf1(d, k):
        A("s_waitcnt lgkmcnt(%d)" % (7 - k))
        A("v_mfma_f32_16x16x32_bf16 %s, %s, %s, %s" % (v(d, 4), v(QF + 4 * k, 4), v(PF + 4 * k, 4), v(d, 4) if k else "0"))
    def phase(rows, prev_d, neg=False):
        for r, mk in enumerate(rows):
            pack(r, mk(), neg)
            if r < 4:
                if prev_d is not None:
                    kmf1(prev_d, 2 * r); kmf1(prev_d, 2 * r + 1)
                if r == 3:
                    if prev_d is None: A("s_waitcnt lgkmcnt(0)")
                    for k in range(4): wr(k)
            else: wr(r)
    cmul(TA_, CR, BR)
    anchor(Z16, 16.0)
    st = {"cur": TA_}
    def prow(i):
        def mk():
            if i:
                o = TB_ if st["cur"] == TA_ else TA_
                cmul(o, st["cur"], Z16); st["cur"] = o
            return st["cur"]
        return mk
    pf(1)
    g.stamp(2, "kg")
    phase([prow(i) for i in range(16)], None, neg=True)
    pf(2)
    g.stamp(3, "kg")
    frags(PF, SRD_)
    anchor(Z1, 1); anchor(Z256, 256.0)
    pf(3)
    A("v_mov_b32 v%d, 1.0" % TB_); A("v_mov_b32 v%d, 1.0" % (TB_ + 1)); A("v_mov_b32 v%d, 0" % (TB_ + 2)); A("v_mov_b32 v%d, 0" % (TB_ + 3))
    def ev(t): return Z16 if t == 16 else EV + 4 * (t // 2 - 1)
    def q0row(t):
        def mk():
            if t == 0: return TB_
            if t == 1: return Z1
            d = ev(t) if t % 2 == 0 else TA_
            cmul(d, Z1 if t == 2 else (TA_ if t % 2 == 0 else ev(t - 1)), Z1)
            return d
        return mk
    phase([q0row(t) for t in range(16)], None)
    pf(4)
    g.stamp(4, "kg")
    utrans(4)
    frags(QF, SR1)
    Z1024, Z1280, Z1536, Z1792 = 36, 40, 32, 44
    def mulrow(b_, t, k):
        def mk():
            if t == 0: return b_
            d = (TA_, TB_)[k & 1]
            cmul(d, b_, ev(t)); return d
        return mk
    phase([mulrow(Z256, 2 * e, e) for e in range(9)], D0)
    g.stamp(5, "kg")
    utrans(5)
    frags(QF, SR2)
    cmul(Z512, Z256, Z256); cmul(Z768, Z512, Z256); cmul(Z1024, Z512, Z512)
    cmul(Z1280, Z1024, Z256); cmul(Z1536, Z1024, Z512); cmul(Z1792, Z1024, Z768)
    big = [Z1024, Z1280, Z1536, Z1792]
    rows = []
    for rho in range(16):
        gg, r = rho >> 2, rho & 3
        if gg < 2: rows.append(mulrow(big[2 * gg + (r >> 1)], 8 + 8 * (1 - (r & 1)), rho))
        else: rows.append(mulrow((Z512, Z768)[gg - 2], 4 + 4 * (3 - r), rho))
    phase(rows, D1)
    g.stamp(6, "kg")
    utrans(6)
    A("v_cmp_eq_u32 vcc, 48, v1"); A("v_cndmask_b32 v17, 0, v17, vcc"); A("v_add_f32 v%d, v%d, v17" % (D0 + 3, D0 + 3))
    for d, x in ((D0, 528), (D1, 272)):
        o = 2 * x - 512
        A("v_cvt_pk_bf16_f32 v24, v%d, v%d" % (d, d + 1)); A("v_cvt_pk_bf16_f32 v25, v%d, v%d" % (d + 2, d + 3)); A("v_cvt_pk_bf16_f32 v31, v%d, v%d" % (d + 1, d + 2))
        A("ds_write_b64 v%d, v[24:25] offset:%d" % (KW, K_C0 + o))
        A("ds_write_b16 v%d, v24 offset:%d" % (KW, K_C1 + o - 2))
        A("ds_write_b32 v%d, v31 offset:%d" % (KW, K_C1 + o))
        A("ds_write_b16_d16_hi v%d, v25 offset:%d" % (KW, K_C1 + o + 4))
    A("v_cvt_pk_bf16_f32 v24, v%d, v%d" % (D1, D1)); A("v_mov_b32 v29, s44")
    A("s_mov_b64 exec, 0x8000")
    A("ds_write_b16 v29, v24 offset:%d" % (K_C0 + 58)); A("ds_write_b32 v29, v24 offset:%d" % (K_C0 + 60))
    A("ds_write_b32 v29, v24 offset:%d" % (K_C1 + 56)); A("ds_write_b16 v29, v24 offset:%d" % (K_C1 + 60))
    A("s_mov_b64 exec, -1")
    frags(QF, SRD_)
    A("v_add_u32 v30, 512, v%d" % KR)
    def kfr(s_):
        ad, o = (KR, 16 * (16 - s_)) if s_ > 8 else (30, 16 * (8 - s_))
        A("ds_read2_b32 %s, v%d offset0:%d offset1:%d" % (v(KF + 4 * s_, 2), ad, o, o + 1))
        A("ds_read2_b32 %s, v%d offset0:%d offset1:%d" % (v(KF + 4 * s_ + 2, 2), ad, o + 2, o + 3))
    for s_ in range(3): kfr(s_)
    A("s_waitcnt lgkmcnt(6)")
    for k in range(8):
        A("v_mfma_f32_16x16x32_bf16 %s, %s, %s, %s" % (v(D2, 4), v(QF + 4 * k, 4), v(PF + 4 * k, 4), v(D2, 4) if k else "0"))
        kfr(3 + k)
    for s_ in range(11, 14): kfr(s_)
    A("v_cvt_pk_bf16_f32 v24, v%d, v%d" % (D2, D2 + 1)); A("v_cvt_pk_bf16_f32 v25, v%d, v%d" % (D2 + 2, D2 + 3))
    A("ds_write_b32 v%d, v24" % R23A); A("ds_write_b32 v%d, v25" % R23B)
    for s_ in range(14, 17): kfr(s_)
    UA, UOA, EA_ = 10, 14, 15
    A("v_lshl_add_u32 v24, v3, 1, v4"); A("v_lshlrev_b32 v24, 7, v24")
    A("v_lshrrev_b32 v25, 1, v4"); A("v_add3_u32 v25, v25, v3, 1")
    for m in range(4):
        A("v_add_u32 v31, %d, v25" % (2 * m)); A("v_and_b32 v31, 7, v31"); A("v_xor_b32 v31, s3, v31"); A("v_lshl_add_u32 v%d, v31, 4, v24" % (UA + m))
    A("v_add_u32 v25, 1, v4"); A("v_lshrrev_b32 v25, 1, v25"); A("v_add3_u32 v25, v25, v3, 6"); A("v_and_b32 v25, 7, v25"); A("v_xor_b32 v25, s3, v25")
    A("v_lshl_add_u32 v%d, v25, 4, v24" % UOA)
    A("v_lshrrev_b32 v25, 1, v4"); A("v_lshl_add_u32 v25, v3, 1, v25"); A("v_lshlrev_b32 v25, 7, v25")
    A("v_and_b32 v31, 7, v3"); A("v_xor_b32 v31, s3, v31"); A("v_lshl_add_u32 v25, v31, 4, v25"); A("v_and_b32 v31, 1, v4"); A("v_lshl_add_u32 v%d, v31, 3, v25" % EA_)
    for dl in (2, 3, 4):
        for op in range(2):
            o = 128 * (4 - dl) + 16 * op
            A("ds_read_b64 %s, v%d offset:%d" % (v(F2 + 8 * (dl - 2) + 4 * op, 2), F2A, o)); A("ds_read_b64 %s, v%d offset:%d" % (v(F2 + 8 * (dl - 2) + 4 * op + 2, 2), F2A, o + 8))
    for dl in (4, 5, 6, 7):
        o = 16 * (7 - dl)
        A("ds_read2_b32 %s, v%d offset0:%d offset1:%d" % (v(F3 + 4 * (dl - 4), 2), F3A, o, o + 1))
        A("ds_read2_b32 %s, v%d offset0:%d offset1:%d" % (v(F3 + 4 * (dl - 4) + 2, 2), F3A, o + 2, o + 3))
    A("ds_read_u16 v29, v29 offset:%d" % (K_R2 + 128))
    g.stamp(2); g.clk(3); g.stamp(7, "kg")
    A("s_cmp_ge_u32 s3, 4"); A("s_cbranch_scc1 L_a_nb")
    A("s_barrier")
    g.stamp(3)
    A("L_a_nb:")
    if g.opt.get("pf", 1):
        A("s_and_b32 s66, s4, 7"); A("s_lshl_b32 s66, s66, 1"); A("s_lshr_b32 s67, s3, 2"); A("s_add_u32 s66, s66, s67"); A("s_mul_i32 s66, s66, %d" % CH_BYTES)
        A("s_lshl_b32 s67, s6, 15"); A("s_add_u32 s66, s66, s67"); A("s_and_b32 s67, s3, 3"); A("s_lshl_b32 s67, s67, 13"); A("s_add_u32 s66, s66, s67")
        A("s_add_u32 s66, s66, %d" % WS_H); A("v_lshlrev_b32 v24, 7, v1")
        A("buffer_load_dword v252, v24, s[40:43], s66 offen")
    A("v_lshlrev_b32 v24, 4, v1"); A("v_add_u32 v24, %d, v24" % BND0)
    for bi in range(6): A("ds_read_b128 %s, v24 offset:%d" % (v(BAND + 4 * bi, 4), 1024 * bi))
    A("ds_read_b128 %s, v24 offset:%d" % (v(FIX, 4), 1024 * 6))
    g.stamp(4)
    NU_, DEP = 6, 4
    def ureg(w): return UB + 4 * ((w + 7) % NU_)
    pend = []
    def rd(tag, txt):
        A(txt); pend.append(tag)
    def need(tag):
        if tag in pend:
            i = pend.index(tag)
            A("s_waitcnt lgkmcnt(%d)" % (len(pend) - 1 - i))
            del pend[:i + 1]
    def rdu(w):
        rd(("u", w), "ds_read_b128 %s, v%d offset:%d" % (v(ureg(w), 4), UA + ((w + 7) & 3), 256 + 512 * (w + 7)))
        if w % 8 == 0 and 0 <= w <= 40:
            rd(("o", w), "ds_read_b128 %s, v%d offset:%d" % (v(UO, 4), UOA, 128 + 512 * (w + 7)))
    started = set()
    def mf(acc, a_, b_, zero=False):
        if ACC <= acc < ACC + 32 and acc not in started:
            zero = True; started.add(acc)
        A("v_mfma_f32_16x16x32_bf16 %s, %s, %s, %s" % (v(acc, 4), v(a_, 4), v(b_, 4), "0" if zero else v(acc, 4)))
    for w in range(-7, -7 + DEP): rdu(w)
    later = {}
    for w in range(-7, 57):
        need(("u", w))
        if w == -7:
            A("v_lshl_or_b32 v29, v29, 16, v29")
            for q in range(4): A("v_and_b32 v%d, v29, v%d" % (FIX + q, FIX + q))
        T = -((-w) // 8)
        u = ureg(w)
        L = []
        for T_, s_ in ((T, 8 * T - w), (T + 1, 8 * T + 8 - w), (T + 2, 8 * T + 16 - w)):
            if T_ <= 7 and s_ <= 16: L.append((ACC + 4 * T_, KF + 4 * s_, u))
        if w in (0, 8, 16, 24): L.append((ACC + 4 * (w // 8 + 4), FIX, u))
        mf(*L[0])
        if w + DEP <= 56: rdu(w + DEP)
        for m in L[1:]: mf(*m)
        if w % 8 == 0 and 0 <= w <= 40:
            sg = w // 8
            need(("o", w))
            for bi in range(6 if sg <= 3 else 4):
                mf(BOX + 4 * bi, UO if BANDS[bi][2] == 24 else u, BAND + 4 * bi, zero=True)
            cv = []
            for op in range(2):
                for rr in range(2):
                    r = 2 * op + rr
                    cv.append("v_cvt_pk_bf16_f32 v%d, v%d, v%d" % (X2 + 4 * op + 2 * rr, BOX + 12 + r, BOX + 8 + r))
                    cv.append("v_cvt_pk_bf16_f32 v%d, v%d, v%d" % (X2 + 4 * op + 2 * rr + 1, BOX + 4 + r, BOX + r))
            if sg <= 3:
                for r in range(4): cv.append("v_cvt_pk_bf16_f32 v%d, v%d, v%d" % (X3 + r, BOX + 20 + r, BOX + 16 + r))
            for i, c_ in enumerate(cv): later.setdefault(w + 2 + i // 4, []).append(c_)
            far = []
            for dl in (2, 3, 4):
                if sg + dl <= 7:
                    for op in range(2): far.append((ACC + 4 * (sg + dl), X2 + 4 * op, F2 + 8 * (dl - 2) + 4 * op))
            if sg <= 3:
                for dl in (4, 5, 6, 7):
                    if sg + dl <= 7: far.append((ACC + 4 * (sg + dl), X3, F3 + 4 * (dl - 4)))
            for i, m in enumerate(far): later.setdefault(w + 5 + i % 3, []).append(m)
        for it in later.pop(w, []):
            if isinstance(it, str): A(it)
            else: mf(*it)
    assert not later
    g.stamp(5); g.clk(5)
    for T in range(8):
        ac = ACC + 4 * T
        A("v_cvt_pk_bf16_f32 v%d, v%d, v%d" % (ac, ac, ac + 1)); A("v_cvt_pk_bf16_f32 v%d, v%d, v%d" % (ac + 1, ac + 2, ac + 3))
        A("ds_write_b64 v%d, %s offset:%d" % (EA_, v(ac, 2), 4096 + 4096 * T))
    A("v_lshrrev_b32 v8, 1, v0"); A("v_and_b32 v9, 1, v0")
    A("v_bfe_u32 v10, v8, 1, 3"); A("v_lshlrev_b32 v12, 2, v9"); A("v_xor_b32 v10, v10, v12"); A("v_lshlrev_b32 v10, 4, v10"); A("v_lshl_add_u32 v20, v8, 7, v10")
    for cc in range(1, 4): A("v_xor_b32 v%d, %d, v20" % (20 + cc, 16 * cc))
    A("s_mov_b32 s66, %d" % (8 * 4608)); A("v_mul_lo_u32 v11, v8, s66"); A("v_lshl_add_u32 v11, v9, 4, v11"); A("s_lshl_b32 s66, s5, 5"); A("v_add_u32 v11, s66, v11")
    for e in range(8): A("s_mov_b32 s%d, %d" % (50 + e, e * 4608))
    A("s_waitcnt lgkmcnt(0)")
    A("s_barrier")
    g.stamp(6)
    for cc in range(4): A("ds_read_b128 %s, v%d offset:4096" % (v(64 + 4 * cc, 4), 20 + cc))
    A("s_waitcnt lgkmcnt(0)")
    for e in range(8):
        for cc in range(4):
            src = 64 + 4 * cc + (e >> 1)
            if e & 1: A("v_and_b32 v%d, 0xffff0000, v%d" % (96 + 4 * e + cc, src))
            else: A("v_lshlrev_b32 v%d, 16, v%d" % (96 + 4 * e + cc, src))
        A("buffer_store_dwordx4 %s, v11, s[36:39], s%d offen" % (v(96 + 4 * e, 4), 50 + e))
    if g.stamps:
        A("s_waitcnt vmcnt(0)")
        g.stamp(7)
        A("s_and_b32 s5, s3, 3"); A("s_cmp_lg_u32 s5, 0"); A("s_cbranch_scc1 L_end")
        A("s_lshl_b32 s5, s3, 6"); A("s_add_u32 s2, s2, s5")
        g.write_stamps(2, 40)
    A("s_endpgm")
    A.lines.extend(side)

def t_role(g):
    A = g.A
    A("s_sub_u32 s4, s2, %d" % (NB + NA))
    A("s_load_dwordx4 s[20:23], s[0:1], %d" % KOFF["B_C_re"])
    A("s_load_dwordx2 s[26:27], s[0:1], %d" % KOFF["ws"])
    A("s_lshr_b32 s5, s4, 3"); A("s_lshl_b32 s5, s5, 3"); A("s_add_u32 s5, s5, s3")
    A("s_mul_i32 s30, s5, %d" % (2 * 8192 + 256))
    A("v_lshlrev_b32 v2, 7, v1")
    A("s_waitcnt lgkmcnt(0)")
    srd(A, 8, 20, 576 * 1152); srd(A, 12, 22, 576 * 1152); srd(A, 16, 26, 0x10000000)
    if g.opt.get("pf", 1):
        for k in range(g.opt.get("tdelay", 0)): A("s_sleep 16")
        for base in (8, 12):
            A("buffer_load_dword v10, v2, s[%d:%d], s30 offen" % (base, base + 3))
            A("s_add_u32 s31, s30, 8192")
            A("buffer_load_dword v11, v2, s[%d:%d], s31 offen" % (base, base + 3))
            A("s_add_u32 s31, s30, 16384"); A("s_mov_b64 exec, 3")
            A("buffer_load_dword v12, v2, s[%d:%d], s31 offen" % (base, base + 3))
            A("s_mov_b64 exec, -1")
    if g.stamps:
        A("s_waitcnt vmcnt(0)")
        g.stamp(3)
        A("s_cmp_lg_u32 s3, 0"); A("s_cbranch_scc1 L_end")
        g.write_stamps(2, 16)
    A("s_endpgm")
```

```python
import sys, struct
from asmlib import *
import hazard

from common import *
from roles_at import a_role, t_role

def b_role(g):
    A = g.A
    A("s_load_dwordx2 s[20:21], s[0:1], %d" % KOFF["B_x"])
    A("s_load_dwordx4 s[24:27], s[0:1], %d" % KOFF["B_Lambda_re"])
    A("s_load_dwordx8 s[28:35], s[0:1], %d" % KOFF["B_B_re"])
    A("s_load_dwordx8 s[36:43], s[0:1], %d" % KOFF["B_log_dt"])
    A("s_load_dwordx2 s[22:23], s[0:1], %d" % KOFF["ws"])
    A("s_and_b32 s4, s2, 7"); A("s_lshr_b32 s5, s2, 3")
    A("s_cmp_ge_u32 s5, 9"); A("s_cselect_b32 s6, 1, 0")
    A("s_lshl_b32 s4, s4, 1"); A("s_add_u32 s4, s4, s6")
    A("s_mul_i32 s7, s6, 9"); A("s_sub_u32 s5, s5, s7")
    A("s_add_u32 s6, s5, s4")
    for _ in range(2):
        A("s_cmp_ge_u32 s6, 9"); A("s_cselect_b32 s7, 9, 0"); A("s_sub_u32 s6, s6, s7")
    A("s_waitcnt lgkmcnt(0)")
    srd(A, 16, 22, 0x10000000)
    A("s_cmp_ge_u32 s3, 4"); A("s_cbranch_scc1 L_bload")
    b_compute(g)
    A("L_bload:")
    b_loader(g)

CPOS = {0: 0, 1: 16384, 2: 32768, 3: 49152, 4: 65536, 5: 81920, 6: 114688, 7: 131072, 8: 147456}
G2_ACC, G2_CREG, G2_HB, G2_CA, G2_TA, G2_HO, G2_OUT = 32, 64, (48, 56, 16), 24, 28, 30, 31

def g2_skip_issue(A, dst, t0, t1, dsk):
    A("v_and_b32 v%d, 31, v1" % t1); A("v_lshrrev_b32 v%d, 5, v1" % t0)
    A("s_lshl_b32 s76, s5, 6"); A("s_lshr_b32 s77, s3, 2"); A("s_lshl_b32 s77, s77, 5"); A("s_add_u32 s76, s76, s77")
    A("v_add_u32 v%d, s76, v%d" % (t1, t1))
    A("s_lshl_b32 s76, s4, 7"); A("s_and_b32 s77, s3, 3"); A("s_lshl_b32 s77, s77, 5"); A("s_add_u32 s76, s76, s77")
    A("v_lshl_add_u32 v%d, v%d, 2, s76" % (t0, t0))
    A("s_movk_i32 s77, 1152"); A("v_mul_lo_u32 v2, v%d, s77" % t0); A("v_lshl_add_u32 v2, v%d, 1, v2" % t1)
    for i in range(16): A("v_mov_b32 v%d, 0" % (dst + i))
    A("v_mov_b32 v%d, 0" % dsk)
    for qd in range(4):
        A("s_mov_b32 s77, %d" % (8 * qd * 1152))
        for r in range(4):
            A("buffer_load_short_d16_hi v%d, v2, s[8:11], s77 offen offset:%d" % (dst + 4 * qd + r, r * 1152))
    A("v_lshlrev_b32 v2, 1, v%d" % t1)
    A("global_load_short_d16_hi v%d, v2, s[38:39]" % dsk)

def g2_skip_finish(A, src, dsk, t0, t1):
    for i in range(16): A("v_mul_f32 v%d, v%d, v%d" % (src + i, src + i, dsk))
    for i in range(0, 16, 2):
        A("v_cvt_pk_bf16_f32 v2, v%d, v%d" % (src + i, src + i + 1))
        A("v_lshlrev_b32 v%d, 16, v2" % (src + i)); A("v_and_b32 v%d, 0xffff0000, v2" % (src + i + 1))
    A("s_movk_i32 s77, 4608")
    A("v_mul_lo_u32 v%d, v%d, s77" % (t0, t0)); A("v_lshl_add_u32 v%d, v%d, 2, v%d" % (t0, t1, t0)); A("v_add_u32 v%d, 2304, v%d" % (t0, t0))

def g2_cread(dst, ks, pl, base):
    return "ds_read_b128 %s, v%d offset:%d" % (v(dst, 4), G2_CA + (ks & 3), CPOS[ks >> 2] - base + pl * 8192)

def g2_setup_and_cregs(A):
    A("v_and_b32 v3, 31, v1"); A("v_lshrrev_b32 v4, 5, v1")
    A("v_bfe_u32 v6, v3, 1, 3"); A("v_xor_b32 v6, v6, v4"); A("v_lshlrev_b32 v5, 7, v3")
    A("s_lshr_b32 s64, s3, 2"); A("s_lshl_b32 s64, s64, 12"); A("v_add_u32 v5, s64, v5")
    for m in range(4):
        A("v_xor_b32 v7, %d, v6" % (2 * m)); A("v_lshl_add_u32 v%d, v7, 4, v5" % (G2_CA + m))
    for ks in range(24):
        if ks == 16:
            for m in range(4): A("v_add_u32 v%d, 0x10000, v%d" % (G2_CA + m, G2_CA + m))
        for pl in range(2): A(g2_cread(G2_CREG + 8 * ks + 4 * pl, ks, pl, 0 if ks < 16 else 65536))
    for m in range(4): A("v_add_u32 v%d, %d, v%d" % (G2_CA + m, 114688 - 65536, G2_CA + m))
    A("v_bfe_u32 v5, v1, 4, 1"); A("v_bfe_u32 v6, v1, 1, 1"); A("v_lshl_add_u32 v5, v5, 1, v6")
    A("v_bfe_u32 v6, v1, 2, 2"); A("v_lshl_add_u32 v6, v4, 3, v6")
    A("v_lshlrev_b32 v7, 2, v5"); A("v_xor_b32 v6, v6, v7"); A("v_lshlrev_b32 v6, 4, v6"); A("v_lshl_add_u32 v6, v5, 11, v6")
    A("v_and_b32 v7, 1, v1"); A("v_lshl_add_u32 v6, v7, 3, v6")
    A("s_and_b32 s64, s3, 3"); A("s_lshl_b32 s64, s64, 8")
    A("v_add_u32 v%d, s64, v6" % G2_TA); A("v_xor_b32 v%d, 64, v%d" % (G2_TA + 1, G2_TA))
    A("s_lshr_b32 s64, s3, 1"); A("s_lshl_b32 s64, s64, 2"); A("v_xor_b32 v6, s64, v1"); A("v_lshlrev_b32 v%d, 4, v6" % G2_HO)
    A("s_lshl_b32 s56, s3, 10")
    A("s_mul_i32 s58, s4, %d" % CH_BYTES); A("s_add_u32 s58, s58, %d" % WS_H); A("s_add_u32 s58, s58, s56")
    A("s_lshl_b32 s59, s6, 15"); A("s_add_u32 s59, s59, s58"); A("s_add_u32 s60, s58, %d" % CH_BYTES)
    A("v_min_u32 v5, 35, v1"); A("v_lshlrev_b32 v5, 2, v5")
    A("s_lshl_b32 s61, s4, 8"); A("s_add_u32 s61, s61, %d" % WS_F)
    srd(A, 24, 40, 2048 * 4608)
    for i in range(16): A("s_mov_b32 s%d, %d" % (64 + i, (8 * (i >> 2) + (i & 3)) * 4608))

def g2_main(g):
    A = g.A
    A("s_mov_b32 s53, 0x8000")
    A("L_fpoll:")
    A("s_sub_u32 s53, s53, 1"); A("s_cbranch_scc1 L_fout")
    A("buffer_load_dword v2, v5, s[16:19], s61 offen sc1")
    A("s_waitcnt vmcnt(0)")
    A("v_cmp_eq_u32 vcc, v2, v18"); A("s_cmp_eq_u64 vcc, -1"); A("s_cbranch_scc1 L_fout")
    A("s_sleep %d" % g.opt.get("psleep", 2))
    A("s_branch L_fpoll")
    A("L_fout:")
    g.stamp(4, "G2")
    def dma(ks):
        L = ["s_add_u32 m0, s56, %d" % (((ks >> 2) % 3) * 32768 + (ks & 3) * 8192),
             "buffer_load_dwordx4 v%d, s[16:19], s59 offen %s lds" % (G2_HO, g.opt.get("hld", "sc1")),
             "s_add_u32 s59, s59, 8192"]
        if ks & 3 == 3: L += ["s_cmp_ge_u32 s59, s60", "s_cselect_b32 s59, s58, s59"]
        return L
    def cbuf(ks): return G2_CREG + 8 * ks if ks < 24 else G2_CREG + 8 * (ks % 3)
    def reads(ks):
        L = []
        off = ((ks >> 2) % 3) * 32768 + (ks & 3) * 8192
        if ks >> 2 in (2, 5, 8) and ks & 3 == 0: L += ["v_add_u32 v%d, 0x10000, v%d" % (G2_TA + k, G2_TA + k) for k in range(2)]
        if ks >> 2 in (3, 6) and ks & 3 == 0: L += ["v_add_u32 v%d, 0xffff0000, v%d" % (G2_TA + k, G2_TA + k) for k in range(2)]
        for pl in range(2):
            for hh in range(2):
                L.append("ds_read_b64_tr_b16 %s, v%d offset:%d" % (v(G2_HB[ks % 3] + 4 * pl + 2 * hh, 2), G2_TA + hh, (off & 0xffff) + pl * 1024))
        if ks >= 24:
            for pl in range(2): L.append(g2_cread(cbuf(ks) + 4 * pl, ks, pl, 114688))
        return L
    for ks in range(8):
        for x in dma(ks): A(x)
    A("s_waitcnt vmcnt(4)")
    A("s_barrier")
    g.stamp(5, "G2")
    def nl(L): return len([x for x in L if x.startswith("ds_")])
    for x in reads(0) + reads(1): A(x)
    for ks in range(8, 12):
        for x in dma(ks): A(x)
    A("s_cmp_lg_u32 s2, %d" % (7 + 8 * 9)); A("s_cbranch_scc1 L_nobump")
    A("s_cmp_lg_u32 s3, 7"); A("s_cbranch_scc1 L_nobump")
    A("v_mov_b32 v2, 0"); A("s_mov_b64 exec, 1")
    A("buffer_store_dword v18, v2, s[16:19], 0 offen sc1")
    A("s_mov_b64 exec, -1"); A("s_waitcnt vmcnt(0)")
    A("L_nobump:")
    for ks in range(36):
        grp, b = ks >> 2, ks & 3
        A("s_waitcnt lgkmcnt(%d)" % (nl(reads(ks + 1)) if b != 3 else 0))
        fill = [[], []]
        if b == 3 and grp < 8:
            A("s_waitcnt vmcnt(%d)" % (4 if grp < 7 else 0))
            if not g.opt.get("g2_nobar"): A("s_barrier")
            fill[0] = reads(ks + 1); fill[1] = reads(ks + 2)
        elif b < 2:
            fill[0] = reads(ks + 2)
        kd_ = ks + 9
        if 12 <= kd_ < 36 and not g.opt.get("g2_nodma"): fill[1] = fill[1] + dma(kd_)
        if g.opt.get("g2_noread"): fill = [[x for x in f if not x.startswith("ds_")] for f in fill]
        for pl in range(2):
            A("v_mfma_f32_32x32x16_bf16 %s, %s, %s, %s" % (v(G2_ACC, 16), v(G2_HB[ks % 3] + 4 * pl, 4), v(cbuf(ks) + 4 * pl, 4), v(G2_ACC, 16)))
            for x in fill[pl]: A(x)
    g.stamp(6, "G2"); g.clk(5)
    for i in range(16):
        A("buffer_store_dword v%d, v%d, s[24:27], s%d offen" % (G2_ACC + i, G2_OUT, 64 + i))
    if g.stamps:
        A("s_waitcnt vmcnt(0)")
        g.stamp(7, "G2")
        A("s_and_b32 s5, s3, 3"); A("s_cmp_lg_u32 s5, 0"); A("s_cbranch_scc1 L_end")
        A("s_lshl_b32 s5, s3, 6"); A("s_add_u32 s2, s2, s5")
        g.write_stamps(2, 16)
    A("s_endpgm")

def die_check(A, nonce, ad, d0, sx, tag):
    A("s_waitcnt vmcnt(5)")
    A("s_mov_b32 s53, 0x8000")
    A("s_branch L_xc%s" % tag)
    A("L_x%s:" % tag)
    A("s_sub_u32 s53, s53, 1"); A("s_cbranch_scc1 L_xo%s" % tag)
    A("buffer_load_dwordx2 %s, v%d, s[16:19], s%d offen sc1" % (v(d0, 2), ad, sx))
    A("s_waitcnt vmcnt(0)")
    A("L_xc%s:" % tag)
    A("v_cmp_eq_u32 vcc, v%d, v%d" % (nonce, d0)); A("s_cmp_eq_u64 vcc, -1"); A("s_cbranch_scc0 L_x%s" % tag)
    A("L_xo%s:" % tag)
    A("v_cmp_eq_u32 vcc, s54, v%d" % (d0 + 1)); A("s_cmp_eq_u64 vcc, -1"); A("s_cselect_b32 s57, 1, 0")

def b_compute(g):
    A = g.A
    ACR, ACI, BUF = 64, 96, (128, 168)
    LAM, KAP, L16, MU, NU, LG, NG, LBA = 20, 22, 24, 26, 28, 30, 58, 60
    XA, BA = 32, 36
    A("v_and_b32 v3, 15, v1"); A("v_lshrrev_b32 v4, 4, v1")
    A("s_lshl_b32 s44, s5, 6"); A("s_lshl_b32 s45, s3, 4"); A("s_add_u32 s44, s44, s45")
    A("v_add_u32 v5, s44, v3"); A("v_lshlrev_b32 v6, 1, v5")
    A("global_load_ushort v8, v6, s[24:25]"); A("global_load_ushort v9, v6, s[26:27]"); A("global_load_ushort v10, v6, s[36:37]")
    A("v_mov_b32 v17, 0"); A("buffer_load_dword v18, v17, s[16:19], 0 offen sc1")
    et = g.opt.get("etouch", 0)
    if et:
        A("s_mul_i32 s64, s4, %d" % CH_BYTES); A("s_lshl_b32 s65, s5, 15"); A("s_add_u32 s64, s64, s65"); A("s_lshl_b32 s65, s3, 13"); A("s_add_u32 s64, s64, s65")
        A("s_add_u32 s64, s64, %d" % WS_H)
        if et == 1: A("buffer_load_dword v19, v17, s[16:19], s64 offen")
        else:
            A("v_lshlrev_b32 v16, 7, v1"); A("buffer_load_dword v19, v16, s[16:19], s64 offen")
    A("s_barrier")
    A("v_lshrrev_b32 v7, 1, v3"); A("v_xor_b32 v7, v7, v4"); A("v_lshlrev_b32 v7, 4, v7"); A("v_lshl_add_u32 v%d, v3, 7, v7" % XA)
    A("v_xor_b32 v%d, 64, v%d" % (XA + 1, XA))
    for i in range(2, 4): A("v_add_u32 v%d, 0x10000, v%d" % (XA + i, XA + i - 2))
    A("s_lshl_b32 s45, s3, 11")
    for i in range(4): A("v_add_u32 v%d, s45, v%d" % (BA + i, XA + i))
    A("s_waitcnt vmcnt(0)")
    A("v_add_u32 v18, 1, v18")
    A("s_getreg_b32 s54, hwreg(HW_REG_XCC_ID, 0, 4)")
    A("s_lshl_b32 s55, s4, 7"); A("s_add_u32 s55, s55, %d" % WS_X)
    A("s_cmp_lg_u32 s3, 0"); A("s_cbranch_scc1 L_nox")
    A("v_mov_b32 v19, s54"); A("s_lshl_b32 s56, s5, 3"); A("v_mov_b32 v7, s56")
    A("s_mov_b64 exec, 1")
    A("buffer_store_dwordx2 v[18:19], v7, s[16:19], s55 offen sc1")
    A("s_mov_b64 exec, -1")
    A("L_nox:")
    A("v_lshlrev_b32 v8, 16, v8"); A("v_lshlrev_b32 v9, 16, v9"); A("v_lshlrev_b32 v10, 16, v10")
    A("v_mul_f32 v10, 0x%x, v10" % LOG2E); A("v_exp_f32 v10, v10")
    A("v_cvt_pk_bf16_f32 v10, v10, v10"); A("v_and_b32 v10, 0xffff0000, v10")
    A("v_mul_f32 v11, v10, v8"); A("v_mul_f32 v12, v10, v9")
    A("v_mul_f32 v11, 0x%x, v11" % LOG2E); A("v_mul_f32 v12, 0x%x, v12" % INV2PI)
    cexp(A, LAM, LAM + 1, 11, 12, None, 13, 14)
    cexp(A, L16, L16 + 1, 11, 12, f32hex(16.0), 13, 14)
    cexp(A, MU, MU + 1, 11, 12, f32hex(32.0), 13, 14)
    cexp(A, NU, NU + 1, 11, 12, f32hex(512.0), 13, 14)
    A("v_lshlrev_b32 v15, 5, v4"); A("v_cvt_f32_u32 v15, v15")
    cexp(A, LG, LG + 1, 11, 12, "v15", 13, 14)
    A("v_mul_f32 v15, 4.0, v15")
    cexp(A, NG, NG + 1, 11, 12, "v15", 13, 14)
    A("s_sub_u32 s58, s4, 1"); A("v_sub_u32 v13, s58, v4"); A("s_movk_i32 s58, %d" % (576 * 16))
    A("v_lshlrev_b32 v14, 4, v5"); A("v_add_u32 v14, %d, v14" % WS_E); A("v_mov_b32 v15, -16")
    for i in range(4):
        A("v_cmp_gt_i32 s[%d:%d], 0, v13" % (60 + 2 * i, 61 + 2 * i))
        A("v_mad_u32_u24 v%d, v13, s58, v14" % (LBA + i))
        A("v_cndmask_b32 v%d, v%d, v15, s[%d:%d]" % (LBA + i, LBA + i, 60 + 2 * i, 61 + 2 * i))
        if i < 3: A("v_add_u32 v13, -4, v13")
    A("v_add_f32 v13, -1.0, v%d" % LAM)
    A("v_mul_f32 v14, v8, v8"); A("v_fmac_f32 v14, v9, v9"); A("v_rcp_f32 v14, v14"); A("v_add_f32 v14, v14, v14")
    A("v_mul_f32 v15, v13, v8"); A("v_fmac_f32 v15, v%d, v9" % (LAM + 1))
    A("v_mul_f32 v16, v%d, v8" % (LAM + 1)); A("v_fma_f32 v16, -v13, v9, v16")
    A("v_mul_f32 v%d, v15, v14" % KAP); A("v_mul_f32 v%d, v16, v14" % (KAP + 1))

    def reads(stage, kk, buf):
        slot = stage % 4; hi = slot >> 1; so = (slot & 1) * 32768
        L = ["ds_read_b128 %s, v%d offset:%d" % (v(buf + 32, 4), BA + kk + 2 * hi, so + 16384),
             "ds_read_b128 %s, v%d offset:%d" % (v(buf + 36, 4), BA + kk + 2 * hi, so + 16384 + 8192)]
        for k in range(8):
            L.append("ds_read_b128 %s, v%d offset:%d" % (v(buf + 4 * k, 4), XA + kk + 2 * hi, so + 2048 * k))
        return L
    RPOS = [0, 1, 3, 4, 6, 7, 9, 10, 12, 13]
    def mfmas(buf, rd, zero=False):
        rd = list(rd); n = 0; tot = len(rd)
        for k in range(8):
            issued = min(len([p for p in RPOS if p < n]), tot)
            A("s_waitcnt lgkmcnt(%d)" % (7 - k + issued))
            for ac, bo in ((ACR, 32), (ACI, 36)):
                A("v_mfma_f32_16x16x32_bf16 %s, %s, %s, %s" % (v(ac + 4 * k, 4), v(buf + 4 * k, 4), v(buf + bo, 4), "0" if zero else v(ac + 4 * k, 4)))
                if n in RPOS and rd: A(rd.pop(0))
                n += 1
    g.stamp(1)
    A("s_barrier")
    g.stamp(2); g.stamp(1, "g1"); g.clk(1)
    for r in reads(0, 0, BUF[0]): A(r)
    for st in range(9):
        mfmas(BUF[0], reads(st, 1, BUF[1]), zero=(st == 0))
        if st < 8:
            A("s_barrier")
            if st == 6:
                A("v_min_u32 v7, 8, v1"); A("v_lshlrev_b32 v7, 3, v7")
                A("buffer_load_dwordx2 v[8:9], v7, s[16:19], s55 offen sc1")
            if st in (0, 1, 3, 5, 7): g.stamp({0: 2, 1: 3, 3: 4, 5: 5, 7: 6}[st], "g1")
            mfmas(BUF[1], reads(st + 1, 0, BUF[0]))
        else:
            A("s_waitcnt lgkmcnt(0)")
            A("s_barrier")
            mfmas(BUF[1], [])
    g.stamp(3); g.stamp(7, "g1"); g.clk(3)
    ER, EI, T1, T2 = 40, 42, 44, 46
    def pr(s): return ACR + 4 * (s >> 1) + 2 * (s & 1)
    def pi(s): return ACI + 4 * (s >> 1) + 2 * (s & 1)
    er, ei = pr(0), pi(0)
    for s in range(1, 16):
        nr, ni = (ER, EI) if s & 1 else (T1, T2)
        A("v_pk_fma_f32 %s, %s, %s, %s %s" % (v(nr, 2), v(LAM, 2), v(er, 2), v(pr(s), 2), LO))
        A("v_pk_fma_f32 %s, %s, %s, %s %s" % (v(ni, 2), v(LAM, 2), v(ei, 2), v(pi(s), 2), LO))
        A("v_pk_fma_f32 %s, %s, %s, %s %s" % (v(nr, 2), v(LAM, 2), v(ei, 2), v(nr, 2), HI + NEG))
        A("v_pk_fma_f32 %s, %s, %s, %s %s" % (v(ni, 2), v(LAM, 2), v(er, 2), v(ni, 2), HI))
        er, ei = nr, ni
    EAt, EBt = (ER, EI), (ER + 1, EI + 1)
    e = [(208, 209), (210, 211), (212, 213), (214, 215)]
    cfma(A, e[0], P(L16), EAt, EBt)
    for c in range(2): A("v_mov_b32 v%d, v%d" % (e[2][c], e[0][c]))
    for c in range(2): A("v_permlane32_swap_b32 v%d, v%d" % (e[0][c], e[2][c]))
    for c in range(2):
        A("v_mov_b32 v%d, v%d" % (e[1][c], e[0][c])); A("v_mov_b32 v%d, v%d" % (e[3][c], e[2][c]))
    for c in range(2):
        A("v_permlane16_swap_b32 v%d, v%d" % (e[0][c], e[1][c])); A("v_permlane16_swap_b32 v%d, v%d" % (e[2][c], e[3][c]))
    PUB = 216
    A("v_mov_b32 v%d, v18" % (PUB + 1)); A("v_mov_b32 v%d, v18" % (PUB + 3))
    A("v_lshlrev_b32 v19, 4, v5")
    A("s_mul_i32 s46, s4, %d" % (576 * 16)); A("s_add_u32 s46, s46, %d" % WS_E)
    cfma(A, e[1], P(MU), e[0], e[1])
    cfma(A, e[2], P(MU), e[1], e[2])
    cfma(A, (PUB, PUB + 2), P(MU), e[2], e[3])
    A("s_mov_b64 exec, 0xffff")
    A("buffer_store_dwordx4 %s, v19, s[16:19], s46 offen sc1" % v(PUB, 4))
    A("s_mov_b64 exec, -1")
    g.stamp(4); g.stamp(1, "lb")
    LB = 128
    for i in range(4): A("buffer_load_dwordx4 %s, v%d, s[16:19], 0 offen sc1" % (v(LB + 4 * i, 4), LBA + i))
    PG = 52
    A("v_cmp_eq_u32 vcc, 1, v4"); A("v_cndmask_b32 v%d, 0, v%d, vcc" % (PG, e[0][0])); A("v_cndmask_b32 v%d, 0, v%d, vcc" % (PG + 1, e[0][1]))
    for k in (2, 3):
        A("v_cmp_eq_u32 vcc, %d, v4" % k)
        for c in range(2): A("v_cndmask_b32 v%d, v%d, v%d, vcc" % (PG + c, PG + c, e[k - 1][c]))
    TS = (48, 50, 54, 56)
    for s in range(16):
        ta, tb = (TS[0], TS[1]) if s & 1 else (TS[2], TS[3])
        A("v_pk_mul_f32 %s, %s, %s %s" % (v(ta, 2), v(KAP, 2), v(pr(s), 2), LO2))
        A("v_pk_mul_f32 %s, %s, %s %s" % (v(tb, 2), v(KAP, 2), v(pr(s), 2), HI2 + NEG2))
        A("v_pk_fma_f32 %s, %s, %s, %s %s" % (v(pr(s), 2), v(KAP, 2), v(pi(s), 2), v(ta, 2), HI + NEG))
        A("v_pk_fma_f32 %s, %s, %s, %s %s" % (v(pi(s), 2), v(KAP, 2), v(pi(s), 2), v(tb, 2), LO + NEG))
    A("s_lshl_b32 s48, s5, 2"); A("s_add_u32 s48, s48, s3")
    A("s_mul_i32 s50, s4, %d" % CH_BYTES); A("s_lshl_b32 s49, s48, 13")
    A("s_add_u32 s50, s50, s49"); A("s_add_u32 s50, s50, %d" % WS_H); A("s_add_u32 s51, s50, 4096")
    A("s_lshl_b32 s52, s4, 8"); A("s_lshl_b32 s49, s48, 2"); A("s_add_u32 s52, s52, s49"); A("s_add_u32 s52, s52, %d" % WS_F)
    A("v_lshlrev_b32 v6, 4, v1")
    g.stamp(2, "lb")
    die_check(A, 18, 7, 8, 55, "c")
    g.stamp(3, "lb")
    srd(A, 8, 20, 2048 * 1152)
    g2_skip_issue(A, 144, 160, 161, 162)
    if g.opt.get("slow"): A("s_mov_b32 s57, 0")
    A("s_mov_b32 s53, 0x8000")
    g.stamp(4, "lb")
    if g.opt.get("stgrp") == "lb":
        A("s_waitcnt vmcnt(0)"); g.stamp(5, "lb")
    A("s_branch L_lb_chk")
    A("L_lb_retry:")
    A("s_sub_u32 s53, s53, 1"); A("s_cbranch_scc1 L_lb_out")
    for i in range(4): A("buffer_load_dwordx4 %s, v%d, s[16:19], 0 offen sc1" % (v(LB + 4 * i, 4), LBA + i))
    A("L_lb_chk:")
    A("s_waitcnt vmcnt(0)")
    for i in range(4):
        A("v_cmp_eq_u32 s[%d:%d], v18, v%d" % (68 + 4 * (i & 1), 69 + 4 * (i & 1), LB + 4 * i + 1))
        A("v_cmp_eq_u32 s[%d:%d], v18, v%d" % (70 + 4 * (i & 1), 71 + 4 * (i & 1), LB + 4 * i + 3))
        b = 68 + 4 * (i & 1)
        A("s_and_b64 s[%d:%d], s[%d:%d], s[%d:%d]" % (b, b + 1, b, b + 1, b + 2, b + 3))
        A("s_or_b64 s[%d:%d], s[%d:%d], s[%d:%d]" % (48 if i == 0 else b, 49 if i == 0 else b + 1, b, b + 1, 60 + 2 * i, 61 + 2 * i))
        if i: A("s_and_b64 s[48:49], s[48:49], s[%d:%d]" % (b, b + 1))
    A("s_cmp_eq_u64 s[48:49], -1"); A("s_cbranch_scc0 L_lb_retry")
    A("L_lb_out:")
    g.stamp(5); g.stamp(6, "lb")
    if g.opt.get("stgrp") == "lb":
        A("s_waitcnt lgkmcnt(0)"); A("s_sub_u32 s98, 0x8000, s53"); A("s_mulk_i32 s98, 100"); A("s_add_u32 s98, s98, s84"); A("s_addc_u32 s99, s85, 0")
    A("s_barrier")
    H = [P(54), P(56)]
    cfma(A, H[0], P(NU), (LB + 12, LB + 14), (LB + 8, LB + 10))
    cfma(A, H[1], P(NU), H[0], (LB + 4, LB + 6))
    cfma(A, H[0], P(NU), H[1], (LB, LB + 2))
    A("v_mul_f32 v56, v%d, v54" % NG); A("v_mul_f32 v57, v%d, v55" % NG)
    A("v_fma_f32 v56, -v%d, v55, v56" % (NG + 1)); A("v_fmac_f32 v57, v%d, v54" % (NG + 1))
    for sw in ("v_permlane32_swap_b32", "v_permlane16_swap_b32"):
        A("v_mov_b32 v54, v56"); A("v_mov_b32 v55, v57")
        A("%s v54, v56" % sw); A("%s v55, v57" % sw)
        A("v_add_f32 v56, v54, v56"); A("v_add_f32 v57, v55, v57")
    cur = H[1]
    cfma(A, (T1, T2), P(LG), cur, P(PG))
    cfma(A, (T1 + 1, T2 + 1), P(L16), (T1, T2), EAt)
    A("v_pk_mul_f32 %s, %s, %s %s" % (v(ER, 2), v(KAP, 2), v(T1, 2), LO2))
    A("v_pk_mul_f32 %s, %s, %s %s" % (v(EI, 2), v(KAP, 2), v(T1, 2), HI2 + NEG2))
    A("v_pk_fma_f32 %s, %s, %s, %s %s" % (v(ER, 2), v(KAP, 2), v(T2, 2), v(ER, 2), HI + NEG))
    A("v_pk_fma_f32 %s, %s, %s, %s %s" % (v(EI, 2), v(KAP, 2), v(T2, 2), v(EI, 2), LO + NEG))
    OUT = 192
    er, ei = ER, EI
    for s in range(16):
        A("v_pk_fma_f32 %s, %s, %s, %s %s" % (v(pr(s), 2), v(LAM, 2), v(er, 2), v(pr(s), 2), LO))
        A("v_pk_fma_f32 %s, %s, %s, %s %s" % (v(pi(s), 2), v(LAM, 2), v(ei, 2), v(pi(s), 2), LO))
        A("v_pk_fma_f32 %s, %s, %s, %s %s" % (v(pr(s), 2), v(LAM, 2), v(ei, 2), v(pr(s), 2), HI))
        A("v_pk_fma_f32 %s, %s, %s, %s %s" % (v(pi(s), 2), v(LAM, 2), v(er, 2), v(pi(s), 2), HI + NEG))
        er, ei = pr(s), pi(s)
        if s & 1:
            k = s >> 1
            for pl, ac in ((0, ACR), (1, ACI)):
                A("v_cvt_pk_bf16_f32 v%d, v%d, v%d" % (OUT + 16 * pl + k, ac + 4 * k, ac + 4 * k + 2))
                A("v_cvt_pk_bf16_f32 v%d, v%d, v%d" % (OUT + 16 * pl + 8 + k, ac + 4 * k + 1, ac + 4 * k + 3))
            if k in (3, 7):
                hf = k >> 2
                A("s_cmp_eq_u32 s57, 1"); A("s_cbranch_scc1 L_hs%da" % hf)
                for aux, lab in ((" sc1", "a"), (g.opt.get("fast_st", ""), "b")):
                    for pl in (0, 1):
                        for run in (0, 1):
                            A("buffer_store_dwordx4 %s, v6, s[16:19], s%d offen offset:%d%s" % (v(OUT + 16 * pl + 8 * run + 4 * hf, 4), 50 + run, hf * 2048 + pl * 1024, aux))
                    if lab == "a": A("s_branch L_hs%db" % hf)
                    A("L_hs%d%s:" % (hf, lab))
    g.stamp(6)
    A("s_waitcnt vmcnt(8)")
    g2_skip_finish(A, 144, 162, 160, 161)
    for i in range(16): A("v_mov_b32 v%d, v%d" % (G2_ACC + i, 144 + i))
    A("v_mov_b32 v%d, v160" % G2_OUT)
    A("s_waitcnt vmcnt(0)")
    A("s_mov_b64 exec, 1")
    A("s_cmp_eq_u32 s57, 1"); A("s_cbranch_scc1 L_fsa")
    A("buffer_store_dword v18, v17, s[16:19], s52 offen sc1")
    A("s_branch L_fsb")
    A("L_fsa:")
    A("buffer_store_dword v18, v17, s[16:19], s52 offen")
    A("L_fsb:")
    A("s_mov_b64 exec, -1")
    g.stamp(7)
    A("L_g2join:")
    g2_setup_and_cregs(A)
    g.stamp(2, "G2")
    A("s_waitcnt lgkmcnt(0)")
    A("s_barrier")
    g.stamp(3, "G2")
    g2_main(g)

def b_loader(g):
    A = g.A
    A("s_sub_u32 s44, s3, 4")
    srd(A, 8, 20, 2048 * 1152)
    A("s_cmp_ge_u32 s44, 2"); A("s_cselect_b32 s48, s30, s28"); A("s_cselect_b32 s49, s31, s29")
    srd(A, 12, 48, 576 * 1152)
    A("s_mov_b32 s45, 1152")
    A("v_lshrrev_b32 v3, 4, v1"); A("v_and_b32 v4, 7, v1"); A("v_xor_b32 v4, v4, v3"); A("v_lshlrev_b32 v4, 4, v4")
    A("v_xor_b32 v5, 64, v4")
    A("v_lshrrev_b32 v6, 5, v1"); A("v_lshlrev_b32 v6, 5, v6")
    A("v_bfe_u32 v7, v1, 3, 1"); A("v_lshl_add_u32 v6, v7, 4, v6")
    A("v_bfe_u32 v7, v1, 4, 1"); A("v_add_u32 v6, v6, v7")
    A("s_lshl_b32 s46, s4, 7"); A("s_lshl_b32 s47, s44, 2"); A("s_add_u32 s46, s46, s47")
    A("v_add_u32 v6, s46, v6"); A("v_mul_lo_u32 v6, v6, s45")
    XO, BO = 8, 12
    for n in range(4):
        A("v_add_u32 v%d, v6, v%d" % (XO + n, 4 + (n & 1)))
        if n: A("v_add_u32 v%d, %d, v%d" % (XO + n, (64 * (n & 1) + 2 * (n >> 1)) * 1152, XO + n))
    A("s_lshl_b32 s46, s5, 6"); A("s_and_b32 s47, s44, 1"); A("s_lshl_b32 s47, s47, 5"); A("s_add_u32 s47, s46, s47")
    A("v_lshrrev_b32 v6, 3, v1"); A("v_add_u32 v6, s47, v6"); A("v_mul_lo_u32 v6, v6, s45")
    for n in range(4):
        A("v_add_u32 v%d, v6, v%d" % (BO + n, 4 + (n & 1)))
        if n: A("v_add_u32 v%d, %d, v%d" % (BO + n, 8 * n * 1152, BO + n))
    A("s_lshl_b32 s50, s44, 12")
    A("s_lshl_b32 s51, s6, 7")
    def adv():
        A("s_add_u32 s51, s51, 128"); A("s_cmp_ge_u32 s51, 1152"); A("s_cselect_b32 s52, 1152, 0"); A("s_sub_u32 s51, s51, s52")
    def issue(stage):
        slot = stage % 4
        for n in range(4):
            A("s_add_u32 m0, s50, %d" % (slot * 32768 + 1024 * n))
            A("buffer_load_dwordx4 v%d, s[8:11], s51 offen lds" % (XO + n))
        for n in range(4):
            A("s_add_u32 m0, s50, %d" % (slot * 32768 + 16384 + 1024 * n))
            A("buffer_load_dwordx4 v%d, s[12:15], s51 offen lds" % (BO + n))
        adv()
    def issue_c(stages):
        for cs in stages:
            A("s_add_u32 s51, s6, %d" % cs); A("s_cmp_ge_u32 s51, 9"); A("s_cselect_b32 s52, 9, 0"); A("s_sub_u32 s51, s51, s52"); A("s_lshl_b32 s51, s51, 7")
            for n in range(4):
                A("s_add_u32 m0, s50, %d" % (CPOS[cs] + 1024 * n))
                A("buffer_load_dwordx4 v%d, s[12:15], s51 offen lds" % (BO + n))
    issue(0)
    A("v_mov_b32 v2, 0")
    A("buffer_load_dword v18, v2, s[16:19], 0 offen sc1")
    A("s_barrier")
    issue(1)
    XO2 = None
    for st in range(9):
        NT = g.opt.get("touch", 0)
        A("s_waitcnt vmcnt(%d)" % (8 + (NT if st >= 7 else 0)))
        A("s_barrier")
        if st + 2 <= 8: issue(st + 2)
        if st == 6 and NT:
            A("s_mul_i32 s64, s4, %d" % CH_BYTES); A("s_lshl_b32 s65, s5, 15"); A("s_add_u32 s64, s64, s65"); A("s_lshl_b32 s65, s44, 13"); A("s_add_u32 s64, s64, s65")
            A("s_add_u32 s64, s64, %d" % WS_H); A("v_lshlrev_b32 v16, 7, v1")
            for k in range(NT): A("buffer_load_dword v17, v16, s[16:19], s64 offen offset:%d" % (64 * k))
        if st == 6:
            A("s_cmp_ge_u32 s44, 2"); A("s_cselect_b32 s48, s34, s32"); A("s_cselect_b32 s49, s35, s33")
            srd(A, 12, 48, 576 * 1152)
        if st == 7: issue_c([7, 8])
    A("v_add_u32 v18, 1, v18")
    A("s_barrier")
    issue_c([0, 1, 2, 3, 4, 5, 6])
    g2_skip_issue(A, G2_ACC, G2_OUT, 29, 28)
    A("s_waitcnt vmcnt(0)")
    g2_skip_finish(A, G2_ACC, 28, G2_OUT, 29)
    g.stamp(1, "G2")
    A("s_barrier")
    A("s_branch L_g2join")

def build(path, stamps=False, **opt):
    g = G(stamps, **opt)
    A = g.A
    kernel_begin(A, KNAME)
    g.stamp(0)
    if stamps:
        for i in range(1, 8): A("s_mov_b64 s[%d:%d], 0" % (84 + 2 * i, 85 + 2 * i))
    A("s_cmp_ge_u32 s2, %d" % (NB + NA + NT)); A("s_cbranch_scc1 L_end")
    A("v_lshrrev_b32 v2, 6, v0"); A("v_and_b32 v1, 63, v0")
    A("v_readfirstlane_b32 s3, v2")
    A("s_cmp_ge_u32 s2, %d" % (NB + NA)); A("s_cbranch_scc1 %s" % ("L_end" if opt.get("noA") else "L_trole"))
    A("s_cmp_ge_u32 s2, %d" % NB); A("s_cbranch_scc1 %s" % ("L_end" if opt.get("noA") else "L_arole"))
    if opt.get("noB"): A("s_branch L_end")
    b_role(g)
    A("L_arole:")
    a_role(g)
    A("L_trole:")
    t_role(g)
    A("L_end:")
    A("s_endpgm")
    lines, n = hazard.fix(A.lines)
    t = HEADER + "; @launch grid=(%d,1,1) block=(512,1,1) lds=163840\n" % (NB + NA + NT)
    t += '.amdgcn_target "amdgcn-amd-amdhsa--gfx950"\n.text\n' + "\n".join(lines) + "\n"
    t += '.section .rodata,"a"\n' + kd(KNAME, 256, 102, 256)
    open(path, "w").write(t)

if __name__ == "__main__":
    build("concat_heads__ssm_conv_s4__ssm_conv_s5__prompt.s")
    build("t_f.s", stamps=True)
    build("t_f_noA.s", stamps=True, noA=True)
    build("t_f_noB.s", stamps=True, noB=True)
    build("t_f_g1.s", stamps=True, noA=True, stgrp="g1")
    build("t_f_slow.s", stamps=True, noA=True, slow=True)
    build("t_f_g2.s", stamps=True, noA=True, stgrp="G2")
    build("t_f_G2.s", stamps=True, stgrp="G2")
    build("t_f_nopf.s", stamps=True, pf=0)
    build("t_f_lb.s", stamps=True, stgrp="lb")
    build("t_f_kg.s", stamps=True, stgrp="kg")
    build("t_f_clk.s", stamps=True, pf=0, stgrp="clk")
    build("t_f_clkB.s", stamps=True, pf=0, stgrp="clk", noA=True)
```
